```python
import torch

def _softmax(x, axis=-1):
    return torch.softmax(x, dim=axis)

def _gelu(x):
    return torch.nn.functional.gelu(x, approximate='tanh')

def _silu(x):
    return torch.nn.functional.silu(x)

def _sigmoid(x):
    return torch.sigmoid(x)

def _layernorm(x, axis=-1, eps=1e-05):
    m = x.mean(dim=axis, keepdim=True)
    v = x.var(dim=axis, keepdim=True, unbiased=False)
    return (x - m) / torch.sqrt(v + eps)

def _scatter_add(tgt, idx, src, axis=0):
    return tgt.clone().index_add_(axis, idx, src)

def _segment_sum(src, seg, n):
    out = torch.zeros((n,) + src.shape[1:], dtype=src.dtype)
    return out.index_add_(0, seg, src)

def _pad(x, pw):
    flat = tuple((v for pair in reversed(pw) for v in pair))
    return torch.nn.functional.pad(x, flat)
kernel_name = 'standalone__factorization_afm__recsys'

def setup_inputs():

    _w = lambda a: (lambda t: t.to(torch.bfloat16) if t.is_floating_point() else t)(torch.as_tensor(a))
    B, F, D, V = (16384, 26, 32, min(1000000, 100000))
    A = D
    ii, jj = tuple(torch.triu_indices(F, F, 1).unbind(0))
    return {'idx': _w((lambda lo, hi, *s: torch.randint(lo, hi, s))(0, V, B, F).to(torch.int64)), 'table': _w((lambda *s: torch.randn(*s, dtype=torch.bfloat16) * 0.8)(V, D)), 'ii': _w(ii.to(torch.int64)), 'jj': _w(jj.to(torch.int64)), 'W': _w((lambda *s: torch.randn(*s, dtype=torch.bfloat16) * 0.8)(D, A) * (1.0 / D ** 0.5)), 'b': _w((lambda *s: torch.randn(*s, dtype=torch.bfloat16) * 0.8)(A)), 'h': _w((lambda *s: torch.randn(*s, dtype=torch.bfloat16) * 0.8)(A)), 'p': _w((lambda *s: torch.randn(*s, dtype=torch.bfloat16) * 0.2)(D))}

def reference(idx, table, ii, jj, W, b, h, p):
    emb = table[idx]
    ei = emb[:, ii, :].clone()
    ej = emb[:, jj, :].clone()
    pair = ei * ej
    hid = pair @ W + b
    hid = 0.5 * (hid + torch.abs(hid))
    e = hid @ h
    alpha = _softmax(e, axis=-1)
    pooled = torch.einsum('bp,bpd->bd', alpha, pair)
    return pooled @ p
```

```python
import re

TRANS = ("v_exp_", "v_log_", "v_rcp_", "v_rsq_", "v_sqrt_", "v_sin_", "v_cos_")


def regs_of(tok):
    tok = tok.strip()
    tok = tok.lstrip("-").strip("|")
    m = re.fullmatch(r"([vas])(\d+)", tok)
    if m:
        return [(m.group(1), int(m.group(2)))]
    m = re.fullmatch(r"([vas])\[(\d+):(\d+)\]", tok)
    if m:
        return [(m.group(1), i) for i in range(int(m.group(2)), int(m.group(3)) + 1)]
    if tok == "vcc":
        return [("s", 106), ("s", 107)]
    if tok == "exec":
        return [("s", 126), ("s", 127)]
    if tok == "m0":
        return [("s", 124)]
    return []


class Ins:
    def __init__(self, text):
        self.text = text
        body = text.split(";")[0].strip()
        self.is_label = body.endswith(":")
        self.is_dir = body.startswith(".") and not self.is_label
        self.real = bool(body) and not self.is_label and not self.is_dir
        self.op = body.split()[0] if body else ""
        self.w, self.r, self.srcc, self.ab = [], [], [], []
        self.passes = 0
        self.kind = "none"
        if not self.real:
            return
        rest = body[len(self.op):].strip()
        ops = [t.strip() for t in re.split(r",(?![^\[]*\])", rest)] if rest else []
        if ops:
            last = ops[-1].split()
            ops[-1] = last[0] if last else ""
            self.mods = " ".join(last[1:])
        else:
            self.mods = ""
        op = self.op
        R = [regs_of(t) for t in ops]
        if op.startswith("v_mfma") or op.startswith("v_smfmac"):
            self.kind = "mfma"
            self.passes = 8 if "32x32" in op else (2 if "4x4" in op else 4)
            self.w = R[0]
            if op.startswith("v_smfmac"):
                self.ab = R[1] + R[2] + R[3]
                self.srcc = R[0]
            else:
                self.ab = R[1] + R[2]
                self.srcc = R[3]
            self.r = self.ab + self.srcc
        elif op.startswith("v_"):
            self.kind = "valu"
            self.w = list(R[0])
            self.r = [x for rr in R[1:] for x in rr]
            if op.startswith("v_permlane") and "swap" in op:
                self.w = R[0] + R[1]
                self.r = R[0] + R[1]
            if op.startswith(("v_fmac", "v_dot2c", "v_writelane")) or "_dpp" in op or "PRESERVE" in self.mods:
                self.r = self.r + R[0]
            if op.startswith("v_cmpx"):
                self.w = self.w + regs_of("exec")
        elif op.startswith(("buffer_load", "global_load")):
            self.kind = "vmem"
            if " lds" in " " + self.mods:
                self.r = [x for rr in R for x in rr]
            else:
                self.w = R[0]
                self.r = [x for rr in R[1:] for x in rr]
        elif op.startswith(("buffer_store", "global_store", "buffer_atomic", "global_atomic")):
            self.kind = "vmem"
            self.r = [x for rr in R for x in rr]
        elif op.startswith(("ds_read", "ds_bpermute", "ds_swizzle")) or re.match(r"ds_\w+_rtn_", op):
            self.kind = "ds"
            self.w = R[0]
            self.r = [x for rr in R[1:] for x in rr]
        elif op.startswith("ds_"):
            self.kind = "ds"
            self.r = [x for rr in R for x in rr]
        elif op.startswith(("s_load", "s_memtime", "s_memrealtime")):
            self.kind = "smem"
            self.w = R[0]
            self.r = [x for rr in R[1:] for x in rr]
        elif op.startswith(("s_cmp", "s_bitcmp")):
            self.kind = "salu"
            self.r = [x for rr in R for x in rr]
        elif op.startswith(("s_waitcnt", "s_nop", "s_barrier", "s_branch", "s_cbranch", "s_endpgm", "s_setprio", "s_sleep")):
            self.kind = "ctl"
        elif op.startswith("s_"):
            self.kind = "salu"
            self.w = list(R[0])
            self.r = [x for rr in R[1:] for x in rr]
            if "saveexec" in op:
                self.w = self.w + regs_of("exec")
        else:
            raise ValueError("unknown op " + text)

    def states(self):
        if self.op == "s_nop":
            return int(self.text.split(";")[0].split()[1]) + 1
        return 1


def need(p, c):
    n = 0
    pw, cr, cw = set(p.w), set(c.r), set(c.w)
    if p.kind == "valu":
        vw = {x for x in pw if x[0] != "s"}
        sw = {x for x in pw if x[0] == "s"}
        if c.kind == "mfma" and vw & cr:
            n = max(n, 2)
        if c.kind == "valu":
            if ("_dpp" in c.op or c.op.startswith("v_permlane")) and vw & cr:
                n = max(n, 2)
            if c.op.startswith(("v_readlane", "v_readfirstlane")) and vw & cr:
                n = max(n, 1)
            if p.op.startswith(TRANS) and vw & cr:
                n = max(n, 1)
            if ("sdwa" in p.op or "op_sel" in p.mods) and vw & (cr | cw):
                n = max(n, 1)
            if sw & cr:
                n = max(n, 4 if c.op.startswith(("v_readlane", "v_writelane")) else 2)
            if ("s", 126) in sw:
                n = max(n, 5)
            if p.op.startswith("v_dot") and vw & (cr | cw):
                n = max(n, 3)
        if c.kind == "mfma" and ("s", 126) in sw:
            n = max(n, 4)
        if c.kind == "vmem" and sw & cr:
            n = max(n, 5)
        if c.kind in ("salu", "smem") and sw & cr:
            n = max(n, 2)
    if p.kind == "mfma":
        full = {2: 5, 4: 8, 8: 12}[p.passes]
        if c.kind in ("valu", "vmem", "ds") and pw & (cr | cw):
            n = max(n, full)
        if c.kind == "mfma":
            if pw & set(c.ab):
                n = max(n, full)
            if pw & set(c.srcc):
                same = list(p.w) == list(c.srcc) and p.op == c.op and p.passes >= 4
                if not same:
                    n = max(n, p.passes + 2)
            elif pw & cw and p.passes != c.passes:
                n = max(n, p.passes + 2)
        if c.kind == "valu" and set(p.srcc) & cw:
            n = max(n, p.passes - 1)
    if p.kind == "vmem" and "store" in p.op and ("x4" in p.op or "x3" in p.op):
        if c.kind == "valu" and set(p.r) & cw:
            n = max(n, 2)
    if p.kind == "salu" and ("s", 124) in pw and (c.kind in ("vmem", "ds")):
        n = max(n, 1)
    return n


class Asm:
    def __init__(self):
        self.ins = []
        self.nopad = False
        self.vm = []
        self.lg = []
        self.pads = 0

    def raw(self, text):
        self.ins.append(Ins(text))

    def comment(self, text):
        self.ins.append(Ins("; " + text))

    def __call__(self, text):
        for line in text.strip("\n").split("\n"):
            self._one(line.strip())

    def _one(self, text):
        c = Ins(text)
        if c.real:
            dist, lack = 0, 0
            for p in reversed(self.ins):
                if not p.real:
                    continue
                k = need(p, c)
                if k > dist and k - dist > lack:
                    lack, who = k - dist, p
                dist += p.states()
                if dist >= 20:
                    break
            if lack:
                if self.nopad:
                    raise RuntimeError(f"hazard: '{who.text}' -> '{text}' lacks {lack}")
                self.ins.append(Ins(f"s_nop {lack - 1}"))
                self.pads += lack
            touched = set(c.r) | set(c.w)
            for q in self.vm + self.lg:
                if q[0] & touched:
                    raise RuntimeError(f"missing waitcnt: '{q[1]}' -> '{text}'")
            if c.op == "s_waitcnt":
                m = re.search(r"vmcnt\((\d+)\)", text)
                if m:
                    n = int(m.group(1))
                    self.vm = self.vm[len(self.vm) - n:] if n and n < len(self.vm) else ([] if n == 0 else self.vm)
                m = re.search(r"lgkmcnt\((\d+)\)", text)
                if m:
                    n = int(m.group(1))
                    assert n <= 15
                    if n and any(q[2] == "smem" for q in self.lg):
                        raise RuntimeError("counted lgkmcnt with smem outstanding")
                    self.lg = self.lg[len(self.lg) - n:] if n and n < len(self.lg) else ([] if n == 0 else self.lg)
            if c.kind == "vmem":
                self.vm.append((set(c.w), text, "vmem"))
            if c.kind in ("ds", "smem"):
                self.lg.append((set(c.w), text, c.kind))
        self.ins.append(c)

    def wait_vm_for(self, regs):
        regs = set(regs)
        last = max([i for i, q in enumerate(self.vm) if q[0] & regs], default=-1)
        if last >= 0:
            self(f"s_waitcnt vmcnt({len(self.vm) - 1 - last})")

    def text(self):
        out = []
        for i in self.ins:
            out.append(i.text if (i.is_label or i.is_dir) else "    " + i.text)
        return "\n".join(out) + "\n"

    def maxv(self):
        return max(x[1] for i in self.ins for x in i.w + i.r if x[0] == "v")
```

```python
import sys, struct, math
from asmlib import Asm

NAME = "standalone__factorization_afm__recsys"
FS = 2112
CS = 528
GS = 26 * FS
L_SCALE = 2 * GS
L_PART = L_SCALE + 256
LDS_BYTES = L_PART + 512 * 16
NP = 82


def f32(x):
    return "0x%08x" % struct.unpack("<I", struct.pack("<f", x))[0]


def v(a, n=1):
    return f"v{a}" if n == 1 else f"v[{a}:{a + n - 1}]"


def lanemask(fn):
    m = 0
    for l in range(64):
        if fn(l):
            m |= 1 << l
    return m


class Cfg:
    chunks = [8, 8, 8, 8, 9]
    NB = 11
    stamps = False


def gen(cfg=Cfg):
    A = Asm()
    vAI, vAW, vSIDX, vSC, vOSC, vM, vL, vACC, vMASK = 1, 2, 3, 4, 5, 6, 9, 10, 11
    vNM = [8, 7]
    vT = [12, 13, 14, 15]
    SLOT = [16 + 8 * i for i in range(5)]
    PROD = 56
    G = 16
    X = [68, 84]
    BIAS, RR, WP, ALIN, AABS, TILE = 100, 116, 124, 132, 148, 156
    NB = cfg.NB
    TMP = TILE + 4 * NB
    WRAW, HRAW, BRAW, PRAW = TMP, TMP + 8, TMP + 16, TMP + 24
    SEL = TMP + 32
    HS, HL, vGC, vW, vQ, vCADD, vWA, vTID = TMP + 40, TMP + 42, TMP + 43, TMP + 44, TMP + 45, TMP + 46, TMP + 47, TMP + 48
    IDX = TMP + 50
    assert IDX + 4 <= 256
    SLOT += [WRAW, HRAW, BRAW]
    DW, DU, DH, DP = X[0], X[1], TILE, TILE + 16
    sW, sROLE, sGRP = 28, 29, 30

    def smask(reg, m):
        A(f"s_mov_b32 s{reg}, 0x{m & 0xffffffff:08x}")
        A(f"s_mov_b32 s{reg + 1}, 0x{m >> 32:08x}")

    def stamp(i):
        if cfg.stamps:
            A(f"s_memtime s[{60 + 2 * i}:{61 + 2 * i}]")

    A("s_cmp_ge_u32 s2, 256")
    A("s_cbranch_scc1 L_end")
    A("s_load_dwordx4 s[4:7], s[0:1], 0")
    A("s_load_dwordx8 s[8:15], s[0:1], 32")
    A("s_load_dwordx4 s[16:19], s[0:1], 64")
    stamp(0)
    A(f"v_mov_b32 {v(vTID)}, v0")
    A("v_lshrrev_b32 v12, 6, v0")
    A("v_lshrrev_b32 v13, 2, v0")
    A(f"v_readfirstlane_b32 s{sW}, v12")
    A("v_mul_u32_u24 v13, 52, v13")
    A("v_and_b32 v14, 3, v0")
    A("v_lshlrev_b32 v14, 4, v14")
    A("v_min_u32 v15, 36, v14")
    A("s_mul_i32 s3, s2, 6656")
    A("v_add3_u32 v13, v13, v15, s3")
    A("v_and_b32 v0, 63, v0")
    A("v_and_b32 v1, 19, v0")
    A("v_and_b32 v2, 4, v0")
    A("v_lshl_or_b32 v1, v2, 1, v1")
    A("v_and_b32 v2, 8, v0")
    A("v_lshrrev_b32 v2, 1, v2")
    A("v_or_b32 v1, v1, v2")
    A("v_lshrrev_b32 v2, 5, v0")
    A("v_lshlrev_b32 v3, 4, v2")
    A("v_lshl_or_b32 v4, v1, 6, v3")
    A("v_lshlrev_b32 v5, 1, v1")
    A("v_and_b32 v6, 16, v0")
    A("v_lshl_or_b32 v6, v2, 3, v6")
    A(f"v_mov_b32 {v(HL)}, 0")
    A("s_waitcnt lgkmcnt(0)")
    A(f"global_load_dwordx4 {v(IDX, 4)}, v13, s[4:5]")
    A(f"global_load_dwordx4 {v(WRAW, 4)}, v4, s[8:9]")
    A(f"global_load_dwordx4 {v(WRAW + 4, 4)}, v4, s[8:9] offset:32")
    A(f"global_load_dwordx4 {v(HRAW, 4)}, v3, s[12:13]")
    A(f"global_load_dwordx4 {v(HRAW + 4, 4)}, v3, s[12:13] offset:32")
    A(f"global_load_dwordx4 {v(BRAW, 4)}, v3, s[10:11]")
    A(f"global_load_dwordx4 {v(BRAW + 4, 4)}, v3, s[10:11] offset:32")
    A(f"global_load_dwordx4 {v(PRAW, 4)}, v3, s[14:15]")
    A(f"global_load_dwordx4 {v(PRAW + 4, 4)}, v3, s[14:15] offset:32")
    A(f"global_load_short_d16_hi {v(HL)}, v5, s[12:13]")
    A(f"global_load_dwordx2 {v(HS, 2)}, v6, s[12:13] offset:32")
    stamp(1)
    A("s_mov_b32 s20, s6")
    A("s_mov_b32 s21, s7")
    A("s_mov_b32 s22, 6400000")
    A("s_mov_b32 s23, 0x00020000")
    A("s_mov_b32 s24, s16")
    A("s_mov_b32 s25, s17")
    A("s_mov_b32 s26, 32768")
    A("s_mov_b32 s27, 0x00020000")
    A(f"s_and_b32 s{sROLE}, s{sW}, 3")
    A(f"s_lshr_b32 s{sGRP}, s{sW}, 2")
    A("v_and_b32 v7, 1, v0")
    A("v_lshlrev_b32 v7, 4, v7")
    A("v_mov_b32 v8, 0x3f80")
    A("v_lshlrev_b32 v7, v7, v8")
    for R in range(8):
        m = lanemask(lambda l: (l >> 5) == ((l >> 2) & 1) and ((l >> 1) & 1) + 2 * ((l >> 3) & 3) == R)
        smask(32 + 2 * (R & 1), m)
        A(f"v_cndmask_b32_e64 {v(SEL + R)}, 0, v7, s[{32 + 2 * (R & 1)}:{33 + 2 * (R & 1)}]")
    A(f"s_mul_i32 s36, s{sGRP}, {GS}")
    A(f"s_lshl_b32 s37, s{sROLE}, 7")
    A("s_add_u32 s37, s37, s36")
    A("v_bfe_u32 v7, v0, 2, 1")
    A(f"v_mul_u32_u24 v7, {13 * FS}, v7")
    A("v_mul_u32_u24 v8, 33, v14")
    A("v_lshrrev_b32 v9, 3, v0")
    A("v_lshl_add_u32 v8, v9, 4, v8")
    A(f"v_add3_u32 {v(vWA)}, v7, v8, s37")
    A(f"v_mul_u32_u24 v7, {CS}, v2")
    A("v_and_b32 v8, 31, v0")
    A("v_lshlrev_b32 v8, 4, v8")
    A(f"v_add3_u32 {v(vAI)}, v7, v8, s36")
    A.wait_vm_for([("v", IDX)])
    stamp(2)
    for k in range(4):
        A(f"v_lshlrev_b32 {v(IDX + k)}, 6, {v(IDX + k)}")
    for t in range(13):
        ql, k = (t // 4, t % 4) if t < 12 else (3, 3)
        a = 2 + (t & 3)
        A(f"v_add_u32_dpp v{a}, {v(IDX + k)}, v14 quad_perm:[{ql},{ql},{ql},{ql}] row_mask:0xf bank_mask:0xf")
        A(f"buffer_load_dwordx4 {v(G + 4 * t, 4)}, v{a}, s[20:23], 0 offen")
    A.wait_vm_for([("v", HS)])
    stamp(3)
    mf = "v_mfma_f32_32x32x16_bf16"
    A(f"{mf} {v(DW, 16)}, {v(WRAW, 4)}, {v(SEL, 4)}, 0")
    A(f"{mf} {v(DW, 16)}, {v(WRAW + 4, 4)}, {v(SEL + 4, 4)}, {v(DW, 16)}")
    A(f"{mf} {v(DP, 16)}, {v(SEL, 4)}, {v(PRAW, 4)}, 0")
    A(f"{mf} {v(DP, 16)}, {v(SEL + 4, 4)}, {v(PRAW + 4, 4)}, {v(DP, 16)}")
    A(f"{mf} {v(DH, 16)}, {v(SEL, 4)}, {v(HRAW, 4)}, 0")
    A(f"{mf} {v(DH, 16)}, {v(SEL + 4, 4)}, {v(HRAW + 4, 4)}, {v(DH, 16)}")
    A(f"{mf} {v(BIAS, 16)}, {v(SEL, 4)}, {v(BRAW, 4)}, 0")
    A(f"{mf} {v(BIAS, 16)}, {v(SEL + 4, 4)}, {v(BRAW + 4, 4)}, {v(BIAS, 16)}")
    A(f"{mf} {v(DU, 16)}, {v(WRAW, 4)}, {v(HRAW, 4)}, 0")
    A(f"{mf} {v(DU, 16)}, {v(WRAW + 4, 4)}, {v(HRAW + 4, 4)}, {v(DU, 16)}")
    A("s_mov_b32 s36, 0x80008000")
    A("v_mov_b32 v2, 0x3f803f80")
    for k in range(2):
        A(f"v_and_or_b32 {v(HS + k)}, {v(HS + k)}, s36, v2")
    for par in range(2):
        for sg in range(2):
            smask(32 + 2 * sg, lanemask(lambda l: (l & 15) == 8 * par + 4 * sg))
            for k in range(2):
                A(f"v_cndmask_b32_e64 {v(AABS + 4 * par + 2 * sg + k)}, 0, {v(HS + k)}, s[{32 + 2 * sg}:{33 + 2 * sg}]")
    for R in range(8):
        A(f"v_and_b32 {v(SEL + R)}, 0x03800380, {v(SEL + R)}")
    A(f"v_max_f32_e64 v2, |{v(DW)}|, |{v(DW + 1)}|")
    A(f"v_max_f32_e64 v3, |{v(DP)}|, |{v(DP + 1)}|")
    for k in range(1, 8):
        A(f"v_max3_f32 v2, |{v(DW + 2 * k)}|, |{v(DW + 2 * k + 1)}|, v2")
        A(f"v_max3_f32 v3, |{v(DP + 2 * k)}|, |{v(DP + 2 * k + 1)}|, v3")
    A(f"v_mul_f32_e64 v2, v2, |{v(HL)}|")
    fill = [f"v_mul_f32_e64 {v(BIAS + k)}, {v(BIAS + k)}, |{v(DH + k)}|" for k in range(16)]

    def filler(n=2):
        for _ in range(n):
            if fill:
                A(fill.pop(0))
    A("v_mov_b32 v5, v3")
    filler(1)
    for ctl in ("quad_perm:[1,0,3,2]", "quad_perm:[2,3,0,1]", "row_half_mirror", "row_mirror"):
        A(f"v_max_f32_dpp v2, v2, v2 {ctl} row_mask:0xf bank_mask:0xf")
        filler()
    A("v_mov_b32 v4, v2")
    A("v_permlane32_swap_b32 v3, v5")
    filler(1)
    A("v_permlane16_swap_b32 v2, v4")
    A("v_max_f32 v3, v3, v5")
    A("v_max_f32 v2, v2, v4")
    A("v_mov_b32 v4, v2")
    filler()
    A("v_permlane32_swap_b32 v2, v4")
    A("v_max_f32 v2, v2, v4")
    filler(16)
    A("v_lshrrev_b32 v2, 23, v2")
    A("v_lshrrev_b32 v3, 23, v3")
    A("v_sub_u32 v2, 136, v2")
    A("v_sub_u32 v3, 141, v3")
    A(f"v_min_i32 {v(vW)}, 40, v2")
    A(f"v_min_i32 {v(vQ)}, 40, v3")
    A(f"v_mov_b32 v2, {f32(0.5 * math.log2(math.e))}")
    A(f"v_ldexp_f32 v2, v2, {v(vW)}")
    A(f"v_ldexp_f32 v3, 1.0, {v(vQ)}")
    A(f"v_mul_f32 {v(vGC)}, {f32(1.0028)}, v2")
    A(f"v_mul_f32_e64 v4, {v(vGC)}, |{v(HL)}|")
    for k in range(16):
        A(f"v_mul_f32 {v(DW + k)}, v4, {v(DW + k)}")
        A(f"v_mul_f32 {v(DU + k)}, v2, {v(DU + k)}")
        A(f"v_mul_f32 {v(DP + k)}, v3, {v(DP + k)}")
    for k in range(8):
        A(f"v_cvt_pk_f16_f32 {v(WP + k)}, {v(DW + 2 * k)}, {v(DW + 2 * k + 1)}")
        A(f"v_cvt_pk_f16_f32 {v(DU + k)}, {v(DU + 2 * k)}, {v(DU + 2 * k + 1)}")
        A(f"v_cvt_pk_f16_f32 {v(DP + k)}, {v(DP + 2 * k)}, {v(DP + 2 * k + 1)}")
    smask(32, lanemask(lambda l: l & 1))
    smask(34, lanemask(lambda l: ((l >> 3) & 1) == 0 and not (l & 2) and ((l >> 2) & 1) == ((l >> 4) & 1)))
    smask(36, lanemask(lambda l: ((l >> 3) & 1) == 1 and not (l & 2) and ((l >> 2) & 1) == ((l >> 4) & 1)))
    A("s_brev_b32 s38, 1")
    for k in range(8):
        A(f"v_cndmask_b32_e64 {v(DU + k)}, {v(DU + k)}, {v(DP + k)}, s[32:33]")
        A(f"v_xor_b32 {v(RR + k)}, {v(DH + k)}, {v(DH + 8 + k)}")
        A(f"v_cndmask_b32_e64 {v(ALIN + k)}, 0, {v(DU + k)}, s[34:35]")
        A(f"v_cndmask_b32_e64 {v(ALIN + 8 + k)}, 0, {v(DU + k)}, s[36:37]")
        A(f"v_and_or_b32 {v(RR + k)}, {v(RR + k)}, s38, 1.0")
    A(f"v_mov_b32 {v(vSIDX)}, 0xdddd")
    A(f"s_cmp_lg_u32 s{sROLE}, 0")
    A("s_cselect_b32 s33, -1, 0")
    A("s_mov_b32 s32, 0")
    A("v_mov_b32 v2, 0xff800000")
    A(f"v_cndmask_b32_e64 {v(vMASK)}, 0, v2, s[32:33]")
    rebase = [0] + sorted(25 - 3 * r for r in range(4))
    A(f"s_mul_i32 s39, s{sROLE}, {3 * FS}")
    for i, u in enumerate(rebase):
        A(f"s_add_u32 s{40 + i}, s39, {(u + 1) * FS}")
        A(f"s_cmp_ge_u32 s{40 + i}, {26 * FS}")
        A(f"s_cselect_b32 s38, {26 * FS}, 0")
        A(f"s_sub_u32 s{40 + i}, s{40 + i}, s38")
    A(f"s_mul_i32 s45, s{sROLE}, {FS}")
    A(f"v_add_u32 {v(vAW)}, s40, {v(vAI)}")
    stamp(4)
    A("v_mov_b32 v12, 0")
    A("v_mov_b32 v13, 0")
    for t in range(13):
        A.wait_vm_for([("v", G + 4 * t)])
        for k in range(4):
            r = G + 4 * t + k
            acc = 12 + (k & 1)
            A(f"v_pk_maximum3_f16 v{acc}, v{r}, v{r}, v{acc} neg_lo:[0,1,0] neg_hi:[0,1,0]")
    stamp(5)
    A("v_pk_max_u16 v12, v12, v13")
    A("v_max_u32_sdwa v12, v12, v12 dst_sel:DWORD dst_unused:UNUSED_PAD src0_sel:WORD_0 src1_sel:WORD_1")
    for ctl in ("quad_perm:[1,0,3,2]", "quad_perm:[2,3,0,1]", "row_half_mirror"):
        A(f"v_max_u32_dpp v12, v12, v12 {ctl} row_mask:0xf bank_mask:0xf")
    A("v_bfe_u32 v12, v12, 7, 8")
    A("v_sub_u32 v12, 254, v12")
    A("s_movk_i32 s38, 160")
    A("v_med3_i32 v12, v12, 0, s38")
    A(f"v_mul_u32_u24 {v(vCADD)}, 0x800080, v12")
    A("v_lshlrev_b32 v12, 1, v12")
    A("v_subrev_u32 v12, 240, v12")
    A(f"v_lshrrev_b32 v13, 3, {v(vTID)}")
    A("v_lshlrev_b32 v13, 2, v13")
    A(f"v_add_u32 v13, {L_SCALE}, v13")
    A("ds_write_b32 v13, v12")

    def cvt_add(t):
        for k in range(4):
            A(f"v_add_u32 {v(G + 4 * t + k)}, {v(vCADD)}, {v(G + 4 * t + k)}")

    def cvt_m(t):
        d = X[(t >> 1) & 1]
        c = v(d, 16) if t & 1 else "0"
        A(f"{mf} {v(d, 16)}, {v(SEL + 4 * (t & 1), 4)}, {v(G + 4 * t, 4)}, {c}")

    def cvt_out(t):
        d = X[(t >> 1) & 1] + 8 * (t & 1)
        for k in range(4):
            A(f"v_cvt_pk_f16_f32 {v(G + 4 * t + k)}, {v(d + 2 * k)}, {v(d + 2 * k + 1)}")
        A(f"ds_write_b128 {v(vWA)}, {v(G + 4 * t, 4)} offset:{t * FS}")
    cvt_add(0)
    cvt_add(1)
    cvt_m(0)
    cvt_add(2)
    cvt_m(1)
    cvt_add(3)
    for t in range(2, 17):
        if t < 13:
            cvt_m(t)
        if t + 2 < 13:
            cvt_add(t + 2)
        if t & 1:
            if t - 3 < 13:
                cvt_out(t - 3)
            if t - 2 < 13:
                cvt_out(t - 2)
    A("s_waitcnt lgkmcnt(0)")
    A("s_barrier")
    stamp(6)
    pairs = []
    loads = []
    last_use = {}

    def add_load(slot, reg, off, first, pre=None):
        loads.append(dict(slot=slot, reg=reg, off=off, first=first, early=last_use.get(slot, -1), pre=pre))
    wslot = lambda u: 2 + u % 3
    base_u = 0
    for t in range(26):
        add_load(t & 1, vAI, t * FS, 3 * t)
        for u in (range(3) if t == 0 else [t + 2]):
            pre = None
            if u in rebase[1:]:
                base_u = u
                pre = f"v_add_u32_e64 {v(vAW)}, s{40 + rebase.index(u)}, {v(vAI)}"
            add_load(wslot(u), vAW, (u - base_u) * FS, 3 * t + (u - t), pre)
        for dlt in range(3):
            pairs.append((t & 1, wslot(t + dlt)))
            last_use[t & 1] = last_use[wslot(t + dlt)] = len(pairs) - 1
    tail = [(5, 6), (7, 0), (wslot(25), wslot(26)), (1, wslot(27))]
    for m_, (sa, sb) in enumerate(tail):
        n = 78 + m_
        if m_ < 3:
            add_load(sa, vAW, 4 * m_ * FS, n, f"v_add_u32_e64 {v(vAW)}, s45, {v(vAI)}" if m_ == 0 else None)
            add_load(sb, vAW, (4 * m_ + 13) * FS, n)
        else:
            add_load(sa, vAI, 12 * FS, n)
            add_load(sb, vAI, 25 * FS, n)
        pairs.append((sa, sb))
    assert len(pairs) == NP

    def ds(ld, q):
        return f"ds_read_b128 {v(SLOT[ld['slot']] + 4 * q, 4)}, {v(ld['reg'])} offset:{ld['off'] + q * 2 * CS}"
    A(f"v_and_b32 v12, 31, v0")
    A(f"s_lshl_b32 s38, s{sGRP}, 7")
    A(f"s_add_u32 s38, s38, {L_SCALE}")
    A(f"v_lshl_add_u32 v12, v12, 2, s38")
    A("ds_read_b32 v12, v12")
    nfirst = 5
    for ld in loads[:nfirst]:
        assert ld["early"] < 0 and ld["pre"] is None
        A(ds(ld, 0))
        A(ds(ld, 1))
    A(f"s_waitcnt lgkmcnt({2 * nfirst})")
    A(f"v_ldexp_f32 v13, {v(vGC)}, v12")
    A(f"v_add_u32 v14, v12, {v(vW)}")
    A(f"v_add_u32 v15, v12, {v(vQ)}")
    A("v_sub_u32 v14, 0, v14")
    A("v_sub_u32 v15, 0, v15")
    A(f"v_ldexp_f32 {v(vSC)}, 1.0, v14")
    A(f"v_ldexp_f32 {v(vOSC)}, 1.0, v15")
    for k in range(16):
        A(f"v_mul_f32 {v(BIAS + k)}, v13, {v(BIAS + k)}")
    A("s_waitcnt lgkmcnt(0)")
    dsq = [(ld, q) for ld in loads[nfirst:] for q in range(2)]

    def P(n, k):
        sa, sb = pairs[n]
        A(f"v_pk_mul_f16 {v(PROD + k)}, {v(SLOT[sa] + k)}, {v(SLOT[sb] + k)}")

    def F(n, k):
        x = X[n & 1]
        A(f"v_fma_f32 {v(x + k)}, |{v(x + k)}|, {v(RR + k)}, |{v(x + 8 + k)}|")
    tile = lambda T: TILE + 4 * (T % NB)

    sm = []
    NT = NP // 2
    assert sum(cfg.chunks) == NT
    maxq = []
    T0 = 0
    nch = len(cfg.chunks)
    for c, sz in enumerate(cfg.chunks):
        Ts = list(range(T0, T0 + sz))
        T0 += sz
        pend = []
        for T in Ts:
            if T == NT - 1:
                maxq.append((2 * T + 3, 1, f"v_add_f32_e64 {v(tile(T))}, {v(tile(T))}, {v(vMASK)}", T))
            pend.append(T)
            if len(pend) == 2:
                if T == 1:
                    maxq.append((2 * T + 3, 1, f"v_max_f32_e64 {v(vM)}, {v(tile(0))}, {v(tile(1))}", T))
                else:
                    maxq.append((2 * T + 3, 1, f"v_max3_f32 {v(vM)}, {v(tile(pend[0]))}, {v(tile(pend[1]))}, {v(vM)}", T))
                pend = []
        if pend:
            maxq.append((2 * pend[0] + 3, 1, f"v_max_f32_e64 {v(vM)}, {v(tile(pend[0]))}, {v(vM)}", pend[0]))
        ready = 2 * Ts[-1] + 3
        nm = vNM[(nch - 1 - c) & 1]
        old = vNM[(nch - c) & 1]
        sm.append((ready, 1, f"v_mul_f32_e64 {v(nm)}, {v(vM)}, -{v(vSC)}", None, len(maxq)))
        if c:
            sm.append((ready, 1, f"v_sub_f32_e64 {v(old)}, {v(nm)}, {v(old)}", None, 0))
            sm.append((ready, 2, f"v_exp_f32_e64 {v(old)}, {v(old)}", None, 0))
        def head(T):
            t = vT[T & 1]
            sm.append((ready, 1, f"v_fma_f32 {v(t)}, {v(tile(T))}, {v(vSC)}, {v(nm)}", T, 0))
            sm.append((ready, 2, f"v_exp_f32_e64 {v(t)}, {v(t)}", None, 0))

        def tailops(T):
            t = vT[T & 1]
            if T == 0:
                sm.append((ready, 1, f"v_mul_f32_e64 {v(vACC)}, {v(t)}, {v(tile(T) + 1)}", T, 0))
                return
            if T == 1:
                sm.append((ready, 1, f"v_add_f32_e64 {v(vL)}, {v(vT[0])}, {v(vT[1])}", None, 0))
            elif T == Ts[0]:
                sm.append((ready, 1, f"v_fma_f32 {v(vL)}, {v(vL)}, {v(old)}, {v(t)}", None, 0))
            else:
                sm.append((ready, 1, f"v_add_f32_e64 {v(vL)}, {v(vL)}, {v(t)}", None, 0))
            sm.append((ready, 1, f"v_fma_f32 {v(vACC)}, {v(t)}, {v(tile(T) + 1)}, {v(vACC)}", T, 0))
        head(Ts[0])
        if c:
            sm.append((ready, 1, f"v_mul_f32_e64 {v(vACC)}, {v(vACC)}, {v(old)}", None, 0))
        if c == 0:
            head(1)
            tailops(0)
            tailops(1)
            head(2)
            rest = Ts[2:]
        else:
            rest = Ts
        for i, T in enumerate(rest):
            if i + 1 < len(rest):
                head(rest[i + 1])
            tailops(T)
    state = dict(credit=0.0, maxdone=0)

    def softmax_slots(n, budget):
        used = cnt = 0
        while True:
            lim = next((s_[4] for s_ in sm if s_[4]), 10 ** 9)
            if maxq and maxq[0][0] <= n and state["maxdone"] < lim:
                it = maxq.pop(0)
                state["maxdone"] += 1
            elif sm and sm[0][0] <= n and used < budget and (sm[0][4] == 0 or state["maxdone"] >= sm[0][4]):
                it = sm.pop(0)
            else:
                break
            if it[3] is not None:
                assert n < 2 * (it[3] + NB), f"tile {it[3]} read too late in unit {n}"
            A(it[2])
            used += it[1]
            cnt += 1
        return used, cnt

    mh = "v_mfma_f32_32x32x16_f16"
    ml = "v_mfma_f32_16x16x32_f16"
    pre_done = set()

    def free_ds(n, after_p):
        if not dsq:
            return 0
        ld, q = dsq[0]
        ok = ld["early"] < n or (ld["early"] == n and after_p)
        if ok and ld["first"] - n <= 6 and (ld["pre"] is None or id(ld) in pre_done):
            dsq.pop(0)
            A(ds(ld, q))
            return 1
        return 0
    A(".p2align 3")
    for k in range(5):
        P(0, k)
    A("s_nop 0")
    A("s_nop 0")
    A.nopad = True
    for n in range(NP + 1):
        live = n < NP
        x = X[n & 1]
        T = n >> 1
        par = n & 1
        if live:
            A(f"{mh} {v(x, 16)}, {v(WP, 4)}, {v(PROD, 4)}, {v(BIAS, 16)}")
            free_ds(n, False)
            for k in (5, 6, 7):
                P(n, k)
        else:
            A.nopad = False
        if n:
            for k in (0, 1, 2):
                F(n - 1, k)
        if live:
            A(f"{ml} {v(tile(T), 4)}, {v(ALIN + 8 * par, 4)}, {v(PROD, 4)}, {v(tile(T), 4) if par else '0'}")
            free_ds(n, True)
        if n:
            F(n - 1, 3)
            F(n - 1, 4)
        else:
            A("s_nop 0")
            A("s_nop 0")
        if live:
            A(f"{ml} {v(tile(T), 4)}, {v(ALIN + 8 * par + 4, 4)}, {v(PROD + 4, 4)}, {v(tile(T), 4)}")
            free_ds(n, True)
        if n:
            F(n - 1, 5)
            F(n - 1, 6)
        extra = 0
        if live:
            A(f"{mh} {v(x, 16)}, {v(WP + 4, 4)}, {v(PROD + 4, 4)}, {v(x, 16)}")
            extra += free_ds(n, True)
        if n:
            F(n - 1, 7)
        if n + 1 < NP:
            for k in range(5):
                P(n + 1, k)
        elif live:
            softmax_slots(n, 6)
            A.nopad = False
        if n:
            A(f"v_smfmac_f32_16x16x64_bf16 {v(tile((n - 1) >> 1), 4)}, {v(AABS + 4 * ((n - 1) & 1), 4)}, {v(X[(n - 1) & 1], 8)}, {v(vSIDX)}")
        if n + 2 < NP:
            regs = {("v", SLOT[s_] + k) for s_ in pairs[n + 2] for k in range(8)}
            assert not any(ld["first"] <= n + 2 for ld, q in dsq), f"load for pair {n + 2} not issued"
            last = max([i for i, q in enumerate(A.lg) if q[0] & regs], default=-1)
            if last >= 0:
                A(f"s_waitcnt lgkmcnt({len(A.lg) - 1 - last})")
                A("s_nop 0")
                extra += 2
        if dsq and dsq[0][0]["pre"] and id(dsq[0][0]) not in pre_done:
            A(dsq[0][0]["pre"])
            pre_done.add(id(dsq[0][0]))
            extra += 1
        state["credit"] += 3.3
        used, cnt = softmax_slots(n, state["credit"])
        state["credit"] = min(state["credit"] - used, 1.0)
        if live and extra + cnt < (3 if n == 0 else 1):
            A("s_nop 1")
            A("s_nop 0")
    softmax_slots(NP + 1, 10 ** 6)
    assert not sm and not maxq and not dsq
    stamp(7)
    A(f"v_mul_f32 {v(vACC)}, {v(vOSC)}, {v(vACC)}")
    A(f"v_lshlrev_b32 v12, 4, {v(vTID)}")
    A(f"v_add_u32 v12, {L_PART}, v12")
    A("ds_write_b96 v12, v[8:10]")
    A("s_waitcnt lgkmcnt(0)")
    A("s_barrier")
    A(f"s_cmp_lg_u32 s{sW}, 0")
    A("s_cbranch_scc1 L_end")
    A("v_lshrrev_b32 v13, 5, v0")
    A(f"v_mul_u32_u24 v13, {(256 - 32) * 16}, v13")
    A("v_add_u32 v12, v12, v13")
    for k in range(8):
        A(f"ds_read_b96 {v(16 + 4 * k, 3)}, v12 offset:{k * 512}")
    A("s_lshl_b32 s3, s2, 7")
    A("v_lshl_add_u32 v1, v0, 1, s3")
    A("s_waitcnt lgkmcnt(0)")
    A("v_min3_f32 v2, v16, v20, v24")
    A("v_min3_f32 v3, v28, v32, v36")
    A("v_min3_f32 v2, v40, v44, v2")
    A("v_min_f32 v2, v2, v3")
    for k in range(8):
        A(f"v_sub_f32 {v(16 + 4 * k)}, v2, {v(16 + 4 * k)}")
    for k in range(8):
        A(f"v_exp_f32 {v(16 + 4 * k)}, {v(16 + 4 * k)}")
    A("v_mul_f32 v3, v16, v17")
    A("v_mul_f32 v4, v16, v18")
    for k in range(1, 8):
        A(f"v_fmac_f32 v3, {v(16 + 4 * k)}, {v(17 + 4 * k)}")
        A(f"v_fmac_f32 v4, {v(16 + 4 * k)}, {v(18 + 4 * k)}")
    A("v_rcp_f32 v3, v3")
    A("v_mul_f32 v3, v3, v4")
    A("v_cvt_pk_bf16_f32 v3, v3, v3")
    A("buffer_store_short v3, v1, s[24:27], 0 offen")
    if cfg.stamps:
        stamp(8)
        A("s_waitcnt lgkmcnt(0)")
        A("s_cmp_lg_u32 s2, 100")
        A("s_cbranch_scc1 L_end")
        for i in range(1, 9):
            A(f"s_sub_u32 s{60 + 2 * i}, s{60 + 2 * i}, s60")
            A(f"v_mov_b32 v3, s{60 + 2 * i}")
            A(f"v_mov_b32 v4, {4 * i}")
            A("global_store_dword v4, v3, s[18:19]")
    A("L_end:")
    A("s_endpgm")
    return A


HEAD = """; @launch grid=(256,1,1) block=(512,1,1) lds={lds}
.amdgcn_target "amdgcn-amd-amdhsa--gfx950"
.text
.globl {n}_kernel
.p2align 8
.type {n}_kernel,@function
{n}_kernel:
"""
TAIL = """.section .rodata,"a"
.p2align 6
.amdhsa_kernel {n}_kernel
  .amdhsa_next_free_vgpr 256
  .amdhsa_next_free_sgpr 96
  .amdhsa_accum_offset 256
  .amdhsa_group_segment_fixed_size 0
  .amdhsa_kernarg_size 88
  .amdhsa_user_sgpr_count 2
  .amdhsa_user_sgpr_kernarg_segment_ptr 1
  .amdhsa_system_sgpr_workgroup_id_x 1
.end_amdhsa_kernel
"""

if __name__ == "__main__":
    out = sys.argv[1]
    for kv in sys.argv[2:]:
        k, val = kv.split("=")
        setattr(Cfg, k, eval(val))
    A = gen(Cfg)
    open(out, "w").write(HEAD.format(n=NAME, lds=LDS_BYTES) + A.text() + TAIL.format(n=NAME))
    print("instructions:", sum(i.real for i in A.ins), "pads:", A.pads, "max vgpr:", A.maxv(), "lds:", LDS_BYTES)
```

```python
import sys, struct, math
from asmlib import Asm

NAME = "standalone__factorization_afm__recsys"
FS = 2112
CS = 528
GS = 26 * FS
L_SCALE = 2 * GS
L_PART = L_SCALE + 256
LDS_BYTES = L_PART + 512 * 16
NP = 82


def f32(x):
    return "0x%08x" % struct.unpack("<I", struct.pack("<f", x))[0]


def v(a, n=1):
    return f"v{a}" if n == 1 else f"v[{a}:{a + n - 1}]"


def lanemask(fn):
    m = 0
    for l in range(64):
        if fn(l):
            m |= 1 << l
    return m


class Cfg:
    chunks = [8, 8, 8, 8, 9]
    NB = 11
    stamps = False


def gen(cfg=Cfg):
    A = Asm()
    vAI, vAW, vSIDX, vSC, vOSC, vM, vL, vACC, vMASK = 1, 2, 3, 4, 5, 6, 9, 10, 11
    vNM = [8, 7]
    vT = [12, 13, 14, 15]
    SLOT = [16 + 8 * i for i in range(5)]
    PROD = 56
    G = 16
    X = [68, 84]
    BIAS, RR, WP, ALIN, AABS, TILE = 100, 116, 124, 132, 148, 156
    NB = cfg.NB
    TMP = TILE + 4 * NB
    WRAW, HRAW, BRAW, PRAW = TMP, TMP + 8, TMP + 16, TMP + 24
    SEL = TMP + 32
    HS, HL, vGC, vW, vQ, vCADD, vWA, vTID = TMP + 40, TMP + 42, TMP + 43, TMP + 44, TMP + 45, TMP + 46, TMP + 47, TMP + 48
    IDX = TMP + 50
    assert IDX + 4 <= 256
    SLOT += [WRAW, HRAW, BRAW]
    DW, DU, DH, DP = X[0], X[1], TILE, TILE + 16
    sW, sROLE, sGRP = 28, 29, 30

    def smask(reg, m):
        A(f"s_mov_b32 s{reg}, 0x{m & 0xffffffff:08x}")
        A(f"s_mov_b32 s{reg + 1}, 0x{m >> 32:08x}")

    def stamp(i):
        if cfg.stamps:
            A(f"s_memtime s[{60 + 2 * i}:{61 + 2 * i}]")
            if i in (6,):
                A("s_waitcnt lgkmcnt(0)")

    A("s_cmp_ge_u32 s2, 256")
    A("s_cbranch_scc1 L_end")
    A("s_load_dwordx4 s[4:7], s[0:1], 0")
    A("s_load_dwordx8 s[8:15], s[0:1], 32")
    A("s_load_dwordx4 s[16:19], s[0:1], 64")
    stamp(0)
    if cfg.stamps:
        A("s_memrealtime s[80:81]")
    A(f"v_mov_b32 {v(vTID)}, v0")
    A("v_lshrrev_b32 v12, 6, v0")
    A("v_lshrrev_b32 v13, 2, v0")
    A(f"v_readfirstlane_b32 s{sW}, v12")
    A("v_mul_u32_u24 v13, 52, v13")
    A("v_and_b32 v14, 3, v0")
    A("v_lshlrev_b32 v14, 4, v14")
    A("v_min_u32 v15, 36, v14")
    A("s_mul_i32 s3, s2, 6656")
    A("v_add3_u32 v13, v13, v15, s3")
    A("v_and_b32 v0, 63, v0")
    A("v_and_b32 v1, 19, v0")
    A("v_and_b32 v2, 4, v0")
    A("v_lshl_or_b32 v1, v2, 1, v1")
    A("v_and_b32 v2, 8, v0")
    A("v_lshrrev_b32 v2, 1, v2")
    A("v_or_b32 v1, v1, v2")
    A("v_lshrrev_b32 v2, 5, v0")
    A("v_lshlrev_b32 v3, 4, v2")
    A("v_lshl_or_b32 v4, v1, 6, v3")
    A("v_lshlrev_b32 v5, 1, v1")
    A("v_and_b32 v6, 16, v0")
    A("v_lshl_or_b32 v6, v2, 3, v6")
    A(f"v_mov_b32 {v(HL)}, 0")
    A("s_waitcnt lgkmcnt(0)")
    A(f"global_load_dwordx4 {v(IDX, 4)}, v13, s[4:5]")
    A(f"global_load_dwordx4 {v(WRAW, 4)}, v4, s[8:9]")
    A(f"global_load_dwordx4 {v(WRAW + 4, 4)}, v4, s[8:9] offset:32")
    A(f"global_load_dwordx4 {v(HRAW, 4)}, v3, s[12:13]")
    A(f"global_load_dwordx4 {v(HRAW + 4, 4)}, v3, s[12:13] offset:32")
    A(f"global_load_dwordx4 {v(BRAW, 4)}, v3, s[10:11]")
    A(f"global_load_dwordx4 {v(BRAW + 4, 4)}, v3, s[10:11] offset:32")
    A(f"global_load_dwordx4 {v(PRAW, 4)}, v3, s[14:15]")
    A(f"global_load_dwordx4 {v(PRAW + 4, 4)}, v3, s[14:15] offset:32")
    A(f"global_load_short_d16_hi {v(HL)}, v5, s[12:13]")
    A(f"global_load_dwordx2 {v(HS, 2)}, v6, s[12:13] offset:32")
    stamp(1)
    A("s_mov_b32 s20, s6")
    A("s_mov_b32 s21, s7")
    A("s_mov_b32 s22, 6400000")
    A("s_mov_b32 s23, 0x00020000")
    A("s_mov_b32 s24, s16")
    A("s_mov_b32 s25, s17")
    A("s_mov_b32 s26, 32768")
    A("s_mov_b32 s27, 0x00020000")
    A(f"s_and_b32 s{sROLE}, s{sW}, 3")
    A(f"s_lshr_b32 s{sGRP}, s{sW}, 2")
    A("v_and_b32 v7, 1, v0")
    A("v_lshlrev_b32 v7, 4, v7")
    A("v_mov_b32 v8, 0x3f80")
    A("v_lshlrev_b32 v7, v7, v8")
    for R in range(8):
        m = lanemask(lambda l: (l >> 5) == ((l >> 2) & 1) and ((l >> 1) & 1) + 2 * ((l >> 3) & 3) == R)
        smask(32 + 2 * (R & 1), m)
        A(f"v_cndmask_b32_e64 {v(SEL + R)}, 0, v7, s[{32 + 2 * (R & 1)}:{33 + 2 * (R & 1)}]")
    A(f"s_mul_i32 s36, s{sGRP}, {GS}")
    A(f"s_lshl_b32 s37, s{sROLE}, 7")
    A("s_add_u32 s37, s37, s36")
    A("v_bfe_u32 v7, v0, 2, 1")
    A(f"v_mul_u32_u24 v7, {13 * FS}, v7")
    A("v_mul_u32_u24 v8, 33, v14")
    A("v_lshrrev_b32 v9, 3, v0")
    A("v_lshl_add_u32 v8, v9, 4, v8")
    A(f"v_add3_u32 {v(vWA)}, v7, v8, s37")
    A(f"v_mul_u32_u24 v7, {CS}, v2")
    A("v_and_b32 v8, 31, v0")
    A("v_lshlrev_b32 v8, 4, v8")
    A(f"v_add3_u32 {v(vAI)}, v7, v8, s36")
    A.wait_vm_for([("v", IDX)])
    stamp(2)
    for k in range(4):
        A(f"v_lshlrev_b32 {v(IDX + k)}, 6, {v(IDX + k)}")
    for t in range(13):
        ql, k = (t // 4, t % 4) if t < 12 else (3, 3)
        a = 2 + (t & 3)
        A(f"v_add_u32_dpp v{a}, {v(IDX + k)}, v14 quad_perm:[{ql},{ql},{ql},{ql}] row_mask:0xf bank_mask:0xf")
        A(f"buffer_load_dwordx4 {v(G + 4 * t, 4)}, v{a}, s[20:23], 0 offen")
    A.wait_vm_for([("v", HS)])
    stamp(3)
    mf = "v_mfma_f32_32x32x16_bf16"
    A(f"{mf} {v(DW, 16)}, {v(WRAW, 4)}, {v(SEL, 4)}, 0")
    A(f"{mf} {v(DW, 16)}, {v(WRAW + 4, 4)}, {v(SEL + 4, 4)}, {v(DW, 16)}")
    A(f"{mf} {v(DP, 16)}, {v(SEL, 4)}, {v(PRAW, 4)}, 0")
    A(f"{mf} {v(DP, 16)}, {v(SEL + 4, 4)}, {v(PRAW + 4, 4)}, {v(DP, 16)}")
    A(f"{mf} {v(DH, 16)}, {v(SEL, 4)}, {v(HRAW, 4)}, 0")
    A(f"{mf} {v(DH, 16)}, {v(SEL + 4, 4)}, {v(HRAW + 4, 4)}, {v(DH, 16)}")
    A(f"{mf} {v(BIAS, 16)}, {v(SEL, 4)}, {v(BRAW, 4)}, 0")
    A(f"{mf} {v(BIAS, 16)}, {v(SEL + 4, 4)}, {v(BRAW + 4, 4)}, {v(BIAS, 16)}")
    A(f"{mf} {v(DU, 16)}, {v(WRAW, 4)}, {v(HRAW, 4)}, 0")
    A(f"{mf} {v(DU, 16)}, {v(WRAW + 4, 4)}, {v(HRAW + 4, 4)}, {v(DU, 16)}")
    A("s_mov_b32 s36, 0x80008000")
    A("v_mov_b32 v2, 0x3f803f80")
    for k in range(2):
        A(f"v_and_or_b32 {v(HS + k)}, {v(HS + k)}, s36, v2")
    for par in range(2):
        for sg in range(2):
            smask(32 + 2 * sg, lanemask(lambda l: (l & 15) == 8 * par + 4 * sg))
            for k in range(2):
                A(f"v_cndmask_b32_e64 {v(AABS + 4 * par + 2 * sg + k)}, 0, {v(HS + k)}, s[{32 + 2 * sg}:{33 + 2 * sg}]")
    for R in range(8):
        A(f"v_and_b32 {v(SEL + R)}, 0x03800380, {v(SEL + R)}")
    A(f"v_max_f32_e64 v2, |{v(DW)}|, |{v(DW + 1)}|")
    A(f"v_max_f32_e64 v3, |{v(DP)}|, |{v(DP + 1)}|")
    for k in range(1, 8):
        A(f"v_max3_f32 v2, |{v(DW + 2 * k)}|, |{v(DW + 2 * k + 1)}|, v2")
        A(f"v_max3_f32 v3, |{v(DP + 2 * k)}|, |{v(DP + 2 * k + 1)}|, v3")
    A(f"v_mul_f32_e64 v2, v2, |{v(HL)}|")
    fill = [f"v_mul_f32_e64 {v(BIAS + k)}, {v(BIAS + k)}, |{v(DH + k)}|" for k in range(16)]

    def filler(n=2):
        for _ in range(n):
            if fill:
                A(fill.pop(0))
    A("v_mov_b32 v5, v3")
    filler(1)
    for ctl in ("quad_perm:[1,0,3,2]", "quad_perm:[2,3,0,1]", "row_half_mirror", "row_mirror"):
        A(f"v_max_f32_dpp v2, v2, v2 {ctl} row_mask:0xf bank_mask:0xf")
        filler()
    A("v_mov_b32 v4, v2")
    A("v_permlane32_swap_b32 v3, v5")
    filler(1)
    A("v_permlane16_swap_b32 v2, v4")
    A("v_max_f32 v3, v3, v5")
    A("v_max_f32 v2, v2, v4")
    A("v_mov_b32 v4, v2")
    filler()
    A("v_permlane32_swap_b32 v2, v4")
    A("v_max_f32 v2, v2, v4")
    filler(16)
    A("v_lshrrev_b32 v2, 23, v2")
    A("v_lshrrev_b32 v3, 23, v3")
    A("v_sub_u32 v2, 136, v2")
    A("v_sub_u32 v3, 141, v3")
    A(f"v_min_i32 {v(vW)}, 40, v2")
    A(f"v_min_i32 {v(vQ)}, 40, v3")
    A(f"v_mov_b32 v2, {f32(0.5 * math.log2(math.e))}")
    A(f"v_ldexp_f32 v2, v2, {v(vW)}")
    A(f"v_ldexp_f32 v3, 1.0, {v(vQ)}")
    A(f"v_mul_f32 {v(vGC)}, {f32(1.0028)}, v2")
    A(f"v_mul_f32_e64 v4, {v(vGC)}, |{v(HL)}|")
    for k in range(16):
        A(f"v_mul_f32 {v(DW + k)}, v4, {v(DW + k)}")
        A(f"v_mul_f32 {v(DU + k)}, v2, {v(DU + k)}")
        A(f"v_mul_f32 {v(DP + k)}, v3, {v(DP + k)}")
    for k in range(8):
        A(f"v_cvt_pk_f16_f32 {v(WP + k)}, {v(DW + 2 * k)}, {v(DW + 2 * k + 1)}")
        A(f"v_cvt_pk_f16_f32 {v(DU + k)}, {v(DU + 2 * k)}, {v(DU + 2 * k + 1)}")
        A(f"v_cvt_pk_f16_f32 {v(DP + k)}, {v(DP + 2 * k)}, {v(DP + 2 * k + 1)}")
    smask(32, lanemask(lambda l: l & 1))
    smask(34, lanemask(lambda l: ((l >> 3) & 1) == 0 and not (l & 2) and ((l >> 2) & 1) == ((l >> 4) & 1)))
    smask(36, lanemask(lambda l: ((l >> 3) & 1) == 1 and not (l & 2) and ((l >> 2) & 1) == ((l >> 4) & 1)))
    A("s_brev_b32 s38, 1")
    for k in range(8):
        A(f"v_cndmask_b32_e64 {v(DU + k)}, {v(DU + k)}, {v(DP + k)}, s[32:33]")
        A(f"v_xor_b32 {v(RR + k)}, {v(DH + k)}, {v(DH + 8 + k)}")
        A(f"v_cndmask_b32_e64 {v(ALIN + k)}, 0, {v(DU + k)}, s[34:35]")
        A(f"v_cndmask_b32_e64 {v(ALIN + 8 + k)}, 0, {v(DU + k)}, s[36:37]")
        A(f"v_and_or_b32 {v(RR + k)}, {v(RR + k)}, s38, 1.0")
    A(f"v_mov_b32 {v(vSIDX)}, 0xdddd")
    A(f"s_cmp_lg_u32 s{sROLE}, 0")
    A("s_cselect_b32 s33, -1, 0")
    A("s_mov_b32 s32, 0")
    A("v_mov_b32 v2, 0xff800000")
    A(f"v_cndmask_b32_e64 {v(vMASK)}, 0, v2, s[32:33]")
    rebase = [0] + sorted(25 - 3 * r for r in range(4))
    A(f"s_mul_i32 s39, s{sROLE}, {3 * FS}")
    for i, u in enumerate(rebase):
        A(f"s_add_u32 s{40 + i}, s39, {(u + 1) * FS}")
        A(f"s_cmp_ge_u32 s{40 + i}, {26 * FS}")
        A(f"s_cselect_b32 s38, {26 * FS}, 0")
        A(f"s_sub_u32 s{40 + i}, s{40 + i}, s38")
    A(f"s_mul_i32 s45, s{sROLE}, {FS}")
    A(f"v_add_u32 {v(vAW)}, s40, {v(vAI)}")
    stamp(4)
    A("v_mov_b32 v12, 0")
    A("v_mov_b32 v13, 0")
    for t in range(13):
        A.wait_vm_for([("v", G + 4 * t)])
        for k in range(4):
            r = G + 4 * t + k
            acc = 12 + (k & 1)
            A(f"v_pk_maximum3_f16 v{acc}, v{r}, v{r}, v{acc} neg_lo:[0,1,0] neg_hi:[0,1,0]")
    stamp(5)
    A("v_pk_max_u16 v12, v12, v13")
    A("v_max_u32_sdwa v12, v12, v12 dst_sel:DWORD dst_unused:UNUSED_PAD src0_sel:WORD_0 src1_sel:WORD_1")
    for ctl in ("quad_perm:[1,0,3,2]", "quad_perm:[2,3,0,1]", "row_half_mirror"):
        A(f"v_max_u32_dpp v12, v12, v12 {ctl} row_mask:0xf bank_mask:0xf")
    A("v_bfe_u32 v12, v12, 7, 8")
    A("v_sub_u32 v12, 254, v12")
    A("s_movk_i32 s38, 160")
    A("v_med3_i32 v12, v12, 0, s38")
    A(f"v_mul_u32_u24 {v(vCADD)}, 0x800080, v12")
    A("v_lshlrev_b32 v12, 1, v12")
    A("v_subrev_u32 v12, 240, v12")
    A(f"v_lshrrev_b32 v13, 3, {v(vTID)}")
    A("v_lshlrev_b32 v13, 2, v13")
    A(f"v_add_u32 v13, {L_SCALE}, v13")
    A("ds_write_b32 v13, v12")

    def cvt_add(t):
        for k in range(4):
            A(f"v_add_u32 {v(G + 4 * t + k)}, {v(vCADD)}, {v(G + 4 * t + k)}")

    def cvt_m(t):
        d = X[(t >> 1) & 1]
        c = v(d, 16) if t & 1 else "0"
        A(f"{mf} {v(d, 16)}, {v(SEL + 4 * (t & 1), 4)}, {v(G + 4 * t, 4)}, {c}")

    def cvt_out(t):
        d = X[(t >> 1) & 1] + 8 * (t & 1)
        for k in range(4):
            A(f"v_cvt_pk_f16_f32 {v(G + 4 * t + k)}, {v(d + 2 * k)}, {v(d + 2 * k + 1)}")
        A(f"ds_write_b128 {v(vWA)}, {v(G + 4 * t, 4)} offset:{t * FS}")
    cvt_add(0)
    cvt_add(1)
    cvt_m(0)
    cvt_add(2)
    cvt_m(1)
    cvt_add(3)
    for t in range(2, 17):
        if t < 13:
            cvt_m(t)
        if t + 2 < 13:
            cvt_add(t + 2)
        if t & 1:
            if t - 3 < 13:
                cvt_out(t - 3)
            if t - 2 < 13:
                cvt_out(t - 2)
    A("s_waitcnt lgkmcnt(0)")
    A("s_barrier")
    stamp(6)
    pairs = []
    loads = []
    last_use = {}

    def add_load(slot, reg, off, first, pre=None):
        loads.append(dict(slot=slot, reg=reg, off=off, first=first, early=last_use.get(slot, -1), pre=pre))
    wslot = lambda u: 2 + u % 3
    base_u = 0
    for t in range(26):
        add_load(t & 1, vAI, t * FS, 3 * t)
        for u in (range(3) if t == 0 else [t + 2]):
            pre = None
            if u in rebase[1:]:
                base_u = u
                pre = f"v_add_u32_e64 {v(vAW)}, s{40 + rebase.index(u)}, {v(vAI)}"
            add_load(wslot(u), vAW, (u - base_u) * FS, 3 * t + (u - t), pre)
        for dlt in range(3):
            pairs.append((t & 1, wslot(t + dlt)))
            last_use[t & 1] = last_use[wslot(t + dlt)] = len(pairs) - 1
    tail = [(5, 6), (7, 0), (wslot(25), wslot(26)), (1, wslot(27))]
    for m_, (sa, sb) in enumerate(tail):
        n = 78 + m_
        if m_ < 3:
            add_load(sa, vAW, 4 * m_ * FS, n, f"v_add_u32_e64 {v(vAW)}, s45, {v(vAI)}" if m_ == 0 else None)
            add_load(sb, vAW, (4 * m_ + 13) * FS, n)
        else:
            add_load(sa, vAI, 12 * FS, n)
            add_load(sb, vAI, 25 * FS, n)
        pairs.append((sa, sb))
    assert len(pairs) == NP

    def ds(ld, q):
        return f"ds_read_b128 {v(SLOT[ld['slot']] + 4 * q, 4)}, {v(ld['reg'])} offset:{ld['off'] + q * 2 * CS}"
    A(f"v_and_b32 v12, 31, v0")
    A(f"s_lshl_b32 s38, s{sGRP}, 7")
    A(f"s_add_u32 s38, s38, {L_SCALE}")
    A(f"v_lshl_add_u32 v12, v12, 2, s38")
    A("ds_read_b32 v12, v12")
    nfirst = 5
    for ld in loads[:nfirst]:
        assert ld["early"] < 0 and ld["pre"] is None
        A(ds(ld, 0))
        A(ds(ld, 1))
    A(f"s_waitcnt lgkmcnt({2 * nfirst})")
    A(f"v_ldexp_f32 v13, {v(vGC)}, v12")
    A(f"v_add_u32 v14, v12, {v(vW)}")
    A(f"v_add_u32 v15, v12, {v(vQ)}")
    A("v_sub_u32 v14, 0, v14")
    A("v_sub_u32 v15, 0, v15")
    A(f"v_ldexp_f32 {v(vSC)}, 1.0, v14")
    A(f"v_ldexp_f32 {v(vOSC)}, 1.0, v15")
    for k in range(16):
        A(f"v_mul_f32 {v(BIAS + k)}, v13, {v(BIAS + k)}")
    A("s_waitcnt lgkmcnt(0)")
    dsq = [(ld, q) for ld in loads[nfirst:] for q in range(2)]

    def P(n, k):
        sa, sb = pairs[n]
        A(f"v_pk_mul_f16 {v(PROD + k)}, {v(SLOT[sa] + k)}, {v(SLOT[sb] + k)}")

    def F(n, k):
        x = X[n & 1]
        A(f"v_fma_f32 {v(x + k)}, |{v(x + k)}|, {v(RR + k)}, |{v(x + 8 + k)}|")
    tile = lambda T: TILE + 4 * (T % NB)

    sm = []
    NT = NP // 2
    assert sum(cfg.chunks) == NT
    maxq = []
    T0 = 0
    nch = len(cfg.chunks)
    for c, sz in enumerate(cfg.chunks):
        Ts = list(range(T0, T0 + sz))
        T0 += sz
        pend = []
        for T in Ts:
            if T == NT - 1:
                maxq.append((2 * T + 3, 1, f"v_add_f32_e64 {v(tile(T))}, {v(tile(T))}, {v(vMASK)}", T))
            pend.append(T)
            if len(pend) == 2:
                if T == 1:
                    maxq.append((2 * T + 3, 1, f"v_max_f32_e64 {v(vM)}, {v(tile(0))}, {v(tile(1))}", T))
                else:
                    maxq.append((2 * T + 3, 1, f"v_max3_f32 {v(vM)}, {v(tile(pend[0]))}, {v(tile(pend[1]))}, {v(vM)}", T))
                pend = []
        if pend:
            maxq.append((2 * pend[0] + 3, 1, f"v_max_f32_e64 {v(vM)}, {v(tile(pend[0]))}, {v(vM)}", pend[0]))
        ready = 2 * Ts[-1] + 3
        nm = vNM[(nch - 1 - c) & 1]
        old = vNM[(nch - c) & 1]
        sm.append((ready, 1, f"v_mul_f32_e64 {v(nm)}, {v(vM)}, -{v(vSC)}", None, len(maxq)))
        if c:
            sm.append((ready, 1, f"v_sub_f32_e64 {v(old)}, {v(nm)}, {v(old)}", None, 0))
            sm.append((ready, 2, f"v_exp_f32_e64 {v(old)}, {v(old)}", None, 0))
        def head(T):
            t = vT[T & 1]
            sm.append((ready, 1, f"v_fma_f32 {v(t)}, {v(tile(T))}, {v(vSC)}, {v(nm)}", T, 0))
            sm.append((ready, 2, f"v_exp_f32_e64 {v(t)}, {v(t)}", None, 0))

        def tailops(T):
            t = vT[T & 1]
            if T == 0:
                sm.append((ready, 1, f"v_mul_f32_e64 {v(vACC)}, {v(t)}, {v(tile(T) + 1)}", T, 0))
                return
            if T == 1:
                sm.append((ready, 1, f"v_add_f32_e64 {v(vL)}, {v(vT[0])}, {v(vT[1])}", None, 0))
            elif T == Ts[0]:
                sm.append((ready, 1, f"v_fma_f32 {v(vL)}, {v(vL)}, {v(old)}, {v(t)}", None, 0))
            else:
                sm.append((ready, 1, f"v_add_f32_e64 {v(vL)}, {v(vL)}, {v(t)}", None, 0))
            sm.append((ready, 1, f"v_fma_f32 {v(vACC)}, {v(t)}, {v(tile(T) + 1)}, {v(vACC)}", T, 0))
        head(Ts[0])
        if c:
            sm.append((ready, 1, f"v_mul_f32_e64 {v(vACC)}, {v(vACC)}, {v(old)}", None, 0))
        if c == 0:
            head(1)
            tailops(0)
            tailops(1)
            head(2)
            rest = Ts[2:]
        else:
            rest = Ts
        for i, T in enumerate(rest):
            if i + 1 < len(rest):
                head(rest[i + 1])
            tailops(T)
    state = dict(credit=0.0, maxdone=0)

    def softmax_slots(n, budget):
        used = cnt = 0
        while True:
            lim = next((s_[4] for s_ in sm if s_[4]), 10 ** 9)
            if maxq and maxq[0][0] <= n and state["maxdone"] < lim:
                it = maxq.pop(0)
                state["maxdone"] += 1
            elif sm and sm[0][0] <= n and used < budget and (sm[0][4] == 0 or state["maxdone"] >= sm[0][4]):
                it = sm.pop(0)
            else:
                break
            if it[3] is not None:
                assert n < 2 * (it[3] + NB), f"tile {it[3]} read too late in unit {n}"
            A(it[2])
            used += it[1]
            cnt += 1
        return used, cnt

    mh = "v_mfma_f32_32x32x16_f16"
    ml = "v_mfma_f32_16x16x32_f16"
    pre_done = set()

    def free_ds(n, after_p):
        if not dsq:
            return 0
        ld, q = dsq[0]
        ok = ld["early"] < n or (ld["early"] == n and after_p)
        if ok and ld["first"] - n <= 6 and (ld["pre"] is None or id(ld) in pre_done):
            dsq.pop(0)
            A(ds(ld, q))
            return 1
        return 0
    A(".p2align 3")
    for k in range(5):
        P(0, k)
    A("s_nop 0")
    A("s_nop 0")
    A.nopad = True
    for n in range(NP + 1):
        live = n < NP
        x = X[n & 1]
        T = n >> 1
        par = n & 1
        if live:
            A(f"{mh} {v(x, 16)}, {v(WP, 4)}, {v(PROD, 4)}, {v(BIAS, 16)}")
            free_ds(n, False)
            for k in (5, 6, 7):
                P(n, k)
        else:
            A.nopad = False
        if n:
            for k in (0, 1, 2):
                F(n - 1, k)
        if live:
            A(f"{ml} {v(tile(T), 4)}, {v(ALIN + 8 * par, 4)}, {v(PROD, 4)}, {v(tile(T), 4) if par else '0'}")
            free_ds(n, True)
        if n:
            F(n - 1, 3)
            F(n - 1, 4)
        else:
            A("s_nop 0")
            A("s_nop 0")
        if live:
            A(f"{ml} {v(tile(T), 4)}, {v(ALIN + 8 * par + 4, 4)}, {v(PROD + 4, 4)}, {v(tile(T), 4)}")
            free_ds(n, True)
        if n:
            F(n - 1, 5)
            F(n - 1, 6)
        extra = 0
        if live:
            A(f"{mh} {v(x, 16)}, {v(WP + 4, 4)}, {v(PROD + 4, 4)}, {v(x, 16)}")
            extra += free_ds(n, True)
        if n:
            F(n - 1, 7)
        if n + 1 < NP:
            for k in range(5):
                P(n + 1, k)
        elif live:
            softmax_slots(n, 6)
            A.nopad = False
        if n:
            A(f"v_smfmac_f32_16x16x64_bf16 {v(tile((n - 1) >> 1), 4)}, {v(AABS + 4 * ((n - 1) & 1), 4)}, {v(X[(n - 1) & 1], 8)}, {v(vSIDX)}")
        if n + 2 < NP:
            regs = {("v", SLOT[s_] + k) for s_ in pairs[n + 2] for k in range(8)}
            assert not any(ld["first"] <= n + 2 for ld, q in dsq), f"load for pair {n + 2} not issued"
            last = max([i for i, q in enumerate(A.lg) if q[0] & regs], default=-1)
            if last >= 0:
                A(f"s_waitcnt lgkmcnt({len(A.lg) - 1 - last})")
                A("s_nop 0")
                extra += 2
        if dsq and dsq[0][0]["pre"] and id(dsq[0][0]) not in pre_done:
            A(dsq[0][0]["pre"])
            pre_done.add(id(dsq[0][0]))
            extra += 1
        state["credit"] += 3.3
        used, cnt = softmax_slots(n, state["credit"])
        state["credit"] = min(state["credit"] - used, 1.0)
        if live and extra + cnt < (3 if n == 0 else 1):
            A("s_nop 1")
            A("s_nop 0")
    softmax_slots(NP + 1, 10 ** 6)
    assert not sm and not maxq and not dsq
    stamp(7)
    A(f"v_mul_f32 {v(vACC)}, {v(vOSC)}, {v(vACC)}")
    A(f"v_lshlrev_b32 v12, 4, {v(vTID)}")
    A(f"v_add_u32 v12, {L_PART}, v12")
    A("ds_write_b96 v12, v[8:10]")
    A("s_waitcnt lgkmcnt(0)")
    A("s_barrier")
    A(f"s_cmp_lg_u32 s{sW}, 0")
    A("s_cbranch_scc1 L_end")
    A("v_lshrrev_b32 v13, 5, v0")
    A(f"v_mul_u32_u24 v13, {(256 - 32) * 16}, v13")
    A("v_add_u32 v12, v12, v13")
    for k in range(8):
        A(f"ds_read_b96 {v(16 + 4 * k, 3)}, v12 offset:{k * 512}")
    A("s_lshl_b32 s3, s2, 7")
    A("v_lshl_add_u32 v1, v0, 1, s3")
    A("s_waitcnt lgkmcnt(0)")
    A("v_min3_f32 v2, v16, v20, v24")
    A("v_min3_f32 v3, v28, v32, v36")
    A("v_min3_f32 v2, v40, v44, v2")
    A("v_min_f32 v2, v2, v3")
    for k in range(8):
        A(f"v_sub_f32 {v(16 + 4 * k)}, v2, {v(16 + 4 * k)}")
    for k in range(8):
        A(f"v_exp_f32 {v(16 + 4 * k)}, {v(16 + 4 * k)}")
    A("v_mul_f32 v3, v16, v17")
    A("v_mul_f32 v4, v16, v18")
    for k in range(1, 8):
        A(f"v_fmac_f32 v3, {v(16 + 4 * k)}, {v(17 + 4 * k)}")
        A(f"v_fmac_f32 v4, {v(16 + 4 * k)}, {v(18 + 4 * k)}")
    A("v_rcp_f32 v3, v3")
    A("v_mul_f32 v3, v3, v4")
    A("v_cvt_pk_bf16_f32 v3, v3, v3")
    A("buffer_store_short v3, v1, s[24:27], 0 offen")
    if cfg.stamps:
        A("s_waitcnt vmcnt(0)")
        stamp(8)
        A("s_memrealtime s[82:83]")
        A("s_waitcnt lgkmcnt(0)")
        A("s_not_b32 s84, s80")
        A("s_not_b32 s85, s82")
        A("s_sub_u32 s86, s82, s80")
        A("s_mov_b64 exec, 1")
        for j, sr in enumerate((84, 80, 85, 82, 86)):
            A(f"v_mov_b32 v3, s{sr}")
            A(f"v_mov_b32 v4, {40 + 4 * j}")
            A("global_atomic_umax v4, v3, s[18:19]")
        A("s_cmp_lg_u32 s2, 100")
        A("s_cbranch_scc1 L_end")
        for i in range(1, 9):
            A(f"s_sub_u32 s{60 + 2 * i}, s{60 + 2 * i}, s60")
            A(f"v_mov_b32 v3, s{60 + 2 * i}")
            A(f"v_mov_b32 v4, {4 * i}")
            A("global_store_dword v4, v3, s[18:19]")
    A("L_end:")
    A("s_endpgm")
    return A


HEAD = """; @launch grid=(256,1,1) block=(512,1,1) lds={lds}
.amdgcn_target "amdgcn-amd-amdhsa--gfx950"
.text
.globl {n}_kernel
.p2align 8
.type {n}_kernel,@function
{n}_kernel:
"""
TAIL = """.section .rodata,"a"
.p2align 6
.amdhsa_kernel {n}_kernel
  .amdhsa_next_free_vgpr 256
  .amdhsa_next_free_sgpr 96
  .amdhsa_accum_offset 256
  .amdhsa_group_segment_fixed_size 0
  .amdhsa_kernarg_size 88
  .amdhsa_user_sgpr_count 2
  .amdhsa_user_sgpr_kernarg_segment_ptr 1
  .amdhsa_system_sgpr_workgroup_id_x 1
.end_amdhsa_kernel
"""

if __name__ == "__main__":
    out = sys.argv[1]
    for kv in sys.argv[2:]:
        k, val = kv.split("=")
        setattr(Cfg, k, eval(val))
    A = gen(Cfg)
    open(out, "w").write(HEAD.format(n=NAME, lds=LDS_BYTES) + A.text() + TAIL.format(n=NAME))
    print("instructions:", sum(i.real for i in A.ins), "pads:", A.pads, "max vgpr:", A.maxv(), "lds:", LDS_BYTES)
```

```python
import sys, struct, math
from asmlib import Asm

NAME = "standalone__factorization_afm__recsys"
FS = 2112
CS = 528
GS = 26 * FS
L_SCALE = 2 * GS
L_PART = L_SCALE + 256
LDS_BYTES = L_PART + 512 * 16
NP = 82


def f32(x):
    return "0x%08x" % struct.unpack("<I", struct.pack("<f", x))[0]


def v(a, n=1):
    return f"v{a}" if n == 1 else f"v[{a}:{a + n - 1}]"


def lanemask(fn):
    m = 0
    for l in range(64):
        if fn(l):
            m |= 1 << l
    return m


class Cfg:
    chunks = [8, 8, 8, 8, 9]
    NB = 11
    stamps = False
    gflags = ""
    exp = ""


def gen(cfg=Cfg):
    A = Asm()
    vAI, vAW, vSIDX, vSC, vOSC, vM, vL, vACC, vMASK = 1, 2, 3, 4, 5, 6, 9, 10, 11
    vNM = [8, 7]
    vT = [12, 13, 14, 15]
    SLOT = [16 + 8 * i for i in range(5)]
    PROD = 56
    G = 16
    X = [68, 84]
    BIAS, RR, WP, ALIN, AABS, TILE = 100, 116, 124, 132, 148, 156
    NB = cfg.NB
    TMP = TILE + 4 * NB
    WRAW, HRAW, BRAW, PRAW = TMP, TMP + 8, TMP + 16, TMP + 24
    SEL = TMP + 32
    HS, HL, vGC, vW, vQ, vCADD, vWA, vTID = TMP + 40, TMP + 42, TMP + 43, TMP + 44, TMP + 45, TMP + 46, TMP + 47, TMP + 48
    IDX = TMP + 50
    assert IDX + 4 <= 256
    SLOT += [WRAW, HRAW, BRAW]
    DW, DU, DH, DP = X[0], X[1], TILE, TILE + 16
    sW, sROLE, sGRP = 28, 29, 30

    def smask(reg, m):
        A(f"s_mov_b32 s{reg}, 0x{m & 0xffffffff:08x}")
        A(f"s_mov_b32 s{reg + 1}, 0x{m >> 32:08x}")

    def stamp(i):
        if cfg.stamps:
            A(f"s_memtime s[{48 + 4 * i}:{49 + 4 * i}]")
            A(f"s_memrealtime s[{50 + 4 * i}:{51 + 4 * i}]")
            if i in (6,):
                A("s_waitcnt lgkmcnt(0)")

    A("s_cmp_ge_u32 s2, 256")
    A("s_cbranch_scc1 L_end")
    A("s_load_dwordx4 s[4:7], s[0:1], 0")
    A("s_load_dwordx8 s[8:15], s[0:1], 32")
    A("s_load_dwordx4 s[16:19], s[0:1], 64")
    stamp(0)
    if cfg.stamps:
        A("s_load_dwordx2 s[88:89], s[0:1], 80")
    A(f"v_mov_b32 {v(vTID)}, v0")
    A("v_lshrrev_b32 v12, 6, v0")
    A("v_lshrrev_b32 v13, 2, v0")
    A(f"v_readfirstlane_b32 s{sW}, v12")
    A("v_mul_u32_u24 v13, 52, v13")
    A("v_and_b32 v14, 3, v0")
    A("v_lshlrev_b32 v14, 4, v14")
    A("v_min_u32 v15, 36, v14")
    A("s_mul_i32 s3, s2, 6656")
    A("v_add3_u32 v13, v13, v15, s3")
    A("v_and_b32 v0, 63, v0")
    A("v_and_b32 v1, 19, v0")
    A("v_and_b32 v2, 4, v0")
    A("v_lshl_or_b32 v1, v2, 1, v1")
    A("v_and_b32 v2, 8, v0")
    A("v_lshrrev_b32 v2, 1, v2")
    A("v_or_b32 v1, v1, v2")
    A("v_lshrrev_b32 v2, 5, v0")
    A("v_lshlrev_b32 v3, 4, v2")
    A("v_lshl_or_b32 v4, v1, 6, v3")
    A("v_lshlrev_b32 v5, 1, v1")
    A("v_and_b32 v6, 16, v0")
    A("v_lshl_or_b32 v6, v2, 3, v6")
    A(f"v_mov_b32 {v(HL)}, 0")
    A("s_waitcnt lgkmcnt(0)")
    A(f"global_load_dwordx4 {v(IDX, 4)}, v13, s[4:5]")
    A(f"global_load_dwordx4 {v(WRAW, 4)}, v4, s[8:9]")
    A(f"global_load_dwordx4 {v(WRAW + 4, 4)}, v4, s[8:9] offset:32")
    A(f"global_load_dwordx4 {v(HRAW, 4)}, v3, s[12:13]")
    A(f"global_load_dwordx4 {v(HRAW + 4, 4)}, v3, s[12:13] offset:32")
    A(f"global_load_dwordx4 {v(BRAW, 4)}, v3, s[10:11]")
    A(f"global_load_dwordx4 {v(BRAW + 4, 4)}, v3, s[10:11] offset:32")
    A(f"global_load_dwordx4 {v(PRAW, 4)}, v3, s[14:15]")
    A(f"global_load_dwordx4 {v(PRAW + 4, 4)}, v3, s[14:15] offset:32")
    A(f"global_load_short_d16_hi {v(HL)}, v5, s[12:13]")
    A(f"global_load_dwordx2 {v(HS, 2)}, v6, s[12:13] offset:32")
    stamp(1)
    A("s_mov_b32 s20, s6")
    A("s_mov_b32 s21, s7")
    A("s_mov_b32 s22, 6400000")
    A("s_mov_b32 s23, 0x00020000")
    A("s_mov_b32 s24, s16")
    A("s_mov_b32 s25, s17")
    A("s_mov_b32 s26, 32768")
    A("s_mov_b32 s27, 0x00020000")
    A(f"s_and_b32 s{sROLE}, s{sW}, 3")
    A(f"s_lshr_b32 s{sGRP}, s{sW}, 2")
    A("v_and_b32 v7, 1, v0")
    A("v_lshlrev_b32 v7, 4, v7")
    A("v_mov_b32 v8, 0x3f80")
    A("v_lshlrev_b32 v7, v7, v8")
    for R in range(8):
        m = lanemask(lambda l: (l >> 5) == ((l >> 2) & 1) and ((l >> 1) & 1) + 2 * ((l >> 3) & 3) == R)
        smask(32 + 2 * (R & 1), m)
        A(f"v_cndmask_b32_e64 {v(SEL + R)}, 0, v7, s[{32 + 2 * (R & 1)}:{33 + 2 * (R & 1)}]")
    A(f"s_mul_i32 s36, s{sGRP}, {GS}")
    A(f"s_lshl_b32 s37, s{sROLE}, 7")
    A("s_add_u32 s37, s37, s36")
    A("v_bfe_u32 v7, v0, 2, 1")
    A(f"v_mul_u32_u24 v7, {13 * FS}, v7")
    A("v_mul_u32_u24 v8, 33, v14")
    A("v_lshrrev_b32 v9, 3, v0")
    A("v_lshl_add_u32 v8, v9, 4, v8")
    A(f"v_add3_u32 {v(vWA)}, v7, v8, s37")
    A(f"v_mul_u32_u24 v7, {CS}, v2")
    A("v_and_b32 v8, 31, v0")
    A("v_lshlrev_b32 v8, 4, v8")
    A(f"v_add3_u32 {v(vAI)}, v7, v8, s36")
    A.wait_vm_for([("v", IDX)])
    stamp(2)
    for k in range(4):
        A(f"v_lshlrev_b32 {v(IDX + k)}, 6, {v(IDX + k)}")
    for t in range(13):
        ql, k = (t // 4, t % 4) if t < 12 else (3, 3)
        a = 2 + (t & 3)
        A(f"v_add_u32_dpp v{a}, {v(IDX + k)}, v14 quad_perm:[{ql},{ql},{ql},{ql}] row_mask:0xf bank_mask:0xf")
        A(f"buffer_load_dwordx4 {v(G + 4 * t, 4)}, v{a}, s[20:23], 0 offen {cfg.gflags}")
    A.wait_vm_for([("v", HS)])
    stamp(3)
    mf = "v_mfma_f32_32x32x16_bf16"
    A(f"{mf} {v(DW, 16)}, {v(WRAW, 4)}, {v(SEL, 4)}, 0")
    A(f"{mf} {v(DW, 16)}, {v(WRAW + 4, 4)}, {v(SEL + 4, 4)}, {v(DW, 16)}")
    A(f"{mf} {v(DP, 16)}, {v(SEL, 4)}, {v(PRAW, 4)}, 0")
    A(f"{mf} {v(DP, 16)}, {v(SEL + 4, 4)}, {v(PRAW + 4, 4)}, {v(DP, 16)}")
    A(f"{mf} {v(DH, 16)}, {v(SEL, 4)}, {v(HRAW, 4)}, 0")
    A(f"{mf} {v(DH, 16)}, {v(SEL + 4, 4)}, {v(HRAW + 4, 4)}, {v(DH, 16)}")
    A(f"{mf} {v(BIAS, 16)}, {v(SEL, 4)}, {v(BRAW, 4)}, 0")
    A(f"{mf} {v(BIAS, 16)}, {v(SEL + 4, 4)}, {v(BRAW + 4, 4)}, {v(BIAS, 16)}")
    A(f"{mf} {v(DU, 16)}, {v(WRAW, 4)}, {v(HRAW, 4)}, 0")
    A(f"{mf} {v(DU, 16)}, {v(WRAW + 4, 4)}, {v(HRAW + 4, 4)}, {v(DU, 16)}")
    A("s_mov_b32 s36, 0x80008000")
    A("v_mov_b32 v2, 0x3f803f80")
    for k in range(2):
        A(f"v_and_or_b32 {v(HS + k)}, {v(HS + k)}, s36, v2")
    for par in range(2):
        for sg in range(2):
            smask(32 + 2 * sg, lanemask(lambda l: (l & 15) == 8 * par + 4 * sg))
            for k in range(2):
                A(f"v_cndmask_b32_e64 {v(AABS + 4 * par + 2 * sg + k)}, 0, {v(HS + k)}, s[{32 + 2 * sg}:{33 + 2 * sg}]")
    for R in range(8):
        A(f"v_and_b32 {v(SEL + R)}, 0x03800380, {v(SEL + R)}")
    A(f"v_max_f32_e64 v2, |{v(DW)}|, |{v(DW + 1)}|")
    A(f"v_max_f32_e64 v3, |{v(DP)}|, |{v(DP + 1)}|")
    for k in range(1, 8):
        A(f"v_max3_f32 v2, |{v(DW + 2 * k)}|, |{v(DW + 2 * k + 1)}|, v2")
        A(f"v_max3_f32 v3, |{v(DP + 2 * k)}|, |{v(DP + 2 * k + 1)}|, v3")
    A(f"v_mul_f32_e64 v2, v2, |{v(HL)}|")
    fill = [f"v_mul_f32_e64 {v(BIAS + k)}, {v(BIAS + k)}, |{v(DH + k)}|" for k in range(16)]

    def filler(n=2):
        for _ in range(n):
            if fill:
                A(fill.pop(0))
    A("v_mov_b32 v5, v3")
    filler(1)
    for ctl in ("quad_perm:[1,0,3,2]", "quad_perm:[2,3,0,1]", "row_half_mirror", "row_mirror"):
        A(f"v_max_f32_dpp v2, v2, v2 {ctl} row_mask:0xf bank_mask:0xf")
        filler()
    A("v_mov_b32 v4, v2")
    A("v_permlane32_swap_b32 v3, v5")
    filler(1)
    A("v_permlane16_swap_b32 v2, v4")
    A("v_max_f32 v3, v3, v5")
    A("v_max_f32 v2, v2, v4")
    A("v_mov_b32 v4, v2")
    filler()
    A("v_permlane32_swap_b32 v2, v4")
    A("v_max_f32 v2, v2, v4")
    filler(16)
    A("v_lshrrev_b32 v2, 23, v2")
    A("v_lshrrev_b32 v3, 23, v3")
    A("v_sub_u32 v2, 136, v2")
    A("v_sub_u32 v3, 141, v3")
    A(f"v_min_i32 {v(vW)}, 40, v2")
    A(f"v_min_i32 {v(vQ)}, 40, v3")
    A(f"v_mov_b32 v2, {f32(0.5 * math.log2(math.e))}")
    A(f"v_ldexp_f32 v2, v2, {v(vW)}")
    A(f"v_ldexp_f32 v3, 1.0, {v(vQ)}")
    A(f"v_mul_f32 {v(vGC)}, {f32(1.0028)}, v2")
    A(f"v_mul_f32_e64 v4, {v(vGC)}, |{v(HL)}|")
    for k in range(16):
        A(f"v_mul_f32 {v(DW + k)}, v4, {v(DW + k)}")
        A(f"v_mul_f32 {v(DU + k)}, v2, {v(DU + k)}")
        A(f"v_mul_f32 {v(DP + k)}, v3, {v(DP + k)}")
    for k in range(8):
        A(f"v_cvt_pk_f16_f32 {v(WP + k)}, {v(DW + 2 * k)}, {v(DW + 2 * k + 1)}")
        A(f"v_cvt_pk_f16_f32 {v(DU + k)}, {v(DU + 2 * k)}, {v(DU + 2 * k + 1)}")
        A(f"v_cvt_pk_f16_f32 {v(DP + k)}, {v(DP + 2 * k)}, {v(DP + 2 * k + 1)}")
    if "w8" in cfg.exp:
        for k in range(8):
            A(f"v_and_b32 {v(WP + k)}, 0xfff8fff8, {v(WP + k)}")
    if "w0" in cfg.exp:
        for k in range(8):
            A(f"v_mov_b32 {v(WP + k)}, 0")
    smask(32, lanemask(lambda l: l & 1))
    smask(34, lanemask(lambda l: ((l >> 3) & 1) == 0 and not (l & 2) and ((l >> 2) & 1) == ((l >> 4) & 1)))
    smask(36, lanemask(lambda l: ((l >> 3) & 1) == 1 and not (l & 2) and ((l >> 2) & 1) == ((l >> 4) & 1)))
    A("s_brev_b32 s38, 1")
    for k in range(8):
        A(f"v_cndmask_b32_e64 {v(DU + k)}, {v(DU + k)}, {v(DP + k)}, s[32:33]")
        A(f"v_xor_b32 {v(RR + k)}, {v(DH + k)}, {v(DH + 8 + k)}")
        A(f"v_cndmask_b32_e64 {v(ALIN + k)}, 0, {v(DU + k)}, s[34:35]")
        A(f"v_cndmask_b32_e64 {v(ALIN + 8 + k)}, 0, {v(DU + k)}, s[36:37]")
        A(f"v_and_or_b32 {v(RR + k)}, {v(RR + k)}, s38, 1.0")
    A(f"v_mov_b32 {v(vSIDX)}, 0xdddd")
    A(f"s_cmp_lg_u32 s{sROLE}, 0")
    A("s_cselect_b32 s33, -1, 0")
    A("s_mov_b32 s32, 0")
    A("v_mov_b32 v2, 0xff800000")
    A(f"v_cndmask_b32_e64 {v(vMASK)}, 0, v2, s[32:33]")
    rebase = [0] + sorted(25 - 3 * r for r in range(4))
    A(f"s_mul_i32 s39, s{sROLE}, {3 * FS}")
    for i, u in enumerate(rebase):
        A(f"s_add_u32 s{40 + i}, s39, {(u + 1) * FS}")
        A(f"s_cmp_ge_u32 s{40 + i}, {26 * FS}")
        A(f"s_cselect_b32 s38, {26 * FS}, 0")
        A(f"s_sub_u32 s{40 + i}, s{40 + i}, s38")
    A(f"s_mul_i32 s45, s{sROLE}, {FS}")
    A(f"v_add_u32 {v(vAW)}, s40, {v(vAI)}")
    stamp(4)
    A("v_mov_b32 v12, 0")
    A("v_mov_b32 v13, 0")
    for t in range(13):
        A.wait_vm_for([("v", G + 4 * t)])
        for k in range(4):
            r = G + 4 * t + k
            acc = 12 + (k & 1)
            A(f"v_pk_maximum3_f16 v{acc}, v{r}, v{r}, v{acc} neg_lo:[0,1,0] neg_hi:[0,1,0]")
    stamp(5)
    A("v_pk_max_u16 v12, v12, v13")
    A("v_max_u32_sdwa v12, v12, v12 dst_sel:DWORD dst_unused:UNUSED_PAD src0_sel:WORD_0 src1_sel:WORD_1")
    for ctl in ("quad_perm:[1,0,3,2]", "quad_perm:[2,3,0,1]", "row_half_mirror"):
        A(f"v_max_u32_dpp v12, v12, v12 {ctl} row_mask:0xf bank_mask:0xf")
    A("v_bfe_u32 v12, v12, 7, 8")
    A("v_sub_u32 v12, 254, v12")
    A("s_movk_i32 s38, 160")
    A("v_med3_i32 v12, v12, 0, s38")
    A(f"v_mul_u32_u24 {v(vCADD)}, 0x800080, v12")
    A("v_lshlrev_b32 v12, 1, v12")
    A("v_subrev_u32 v12, 240, v12")
    A(f"v_lshrrev_b32 v13, 3, {v(vTID)}")
    A("v_lshlrev_b32 v13, 2, v13")
    A(f"v_add_u32 v13, {L_SCALE}, v13")
    A("ds_write_b32 v13, v12")

    def cvt_add(t):
        for k in range(4):
            A(f"v_add_u32 {v(G + 4 * t + k)}, {v(vCADD)}, {v(G + 4 * t + k)}")

    def cvt_m(t):
        d = X[(t >> 1) & 1]
        c = v(d, 16) if t & 1 else "0"
        A(f"{mf} {v(d, 16)}, {v(SEL + 4 * (t & 1), 4)}, {v(G + 4 * t, 4)}, {c}")

    def cvt_out(t):
        d = X[(t >> 1) & 1] + 8 * (t & 1)
        for k in range(4):
            A(f"v_cvt_pk_f16_f32 {v(G + 4 * t + k)}, {v(d + 2 * k)}, {v(d + 2 * k + 1)}")
        A(f"ds_write_b128 {v(vWA)}, {v(G + 4 * t, 4)} offset:{t * FS}")
    cvt_add(0)
    cvt_add(1)
    cvt_m(0)
    cvt_add(2)
    cvt_m(1)
    cvt_add(3)
    for t in range(2, 17):
        if t < 13:
            cvt_m(t)
        if t + 2 < 13:
            cvt_add(t + 2)
        if t & 1:
            if t - 3 < 13:
                cvt_out(t - 3)
            if t - 2 < 13:
                cvt_out(t - 2)
    A("s_waitcnt lgkmcnt(0)")
    A("s_barrier")
    stamp(6)
    pairs = []
    loads = []
    last_use = {}

    def add_load(slot, reg, off, first, pre=None):
        loads.append(dict(slot=slot, reg=reg, off=off, first=first, early=last_use.get(slot, -1), pre=pre))
    wslot = lambda u: 2 + u % 3
    base_u = 0
    for t in range(26):
        add_load(t & 1, vAI, t * FS, 3 * t)
        for u in (range(3) if t == 0 else [t + 2]):
            pre = None
            if u in rebase[1:]:
                base_u = u
                pre = f"v_add_u32_e64 {v(vAW)}, s{40 + rebase.index(u)}, {v(vAI)}"
            add_load(wslot(u), vAW, (u - base_u) * FS, 3 * t + (u - t), pre)
        for dlt in range(3):
            pairs.append((t & 1, wslot(t + dlt)))
            last_use[t & 1] = last_use[wslot(t + dlt)] = len(pairs) - 1
    tail = [(5, 6), (7, 0), (wslot(25), wslot(26)), (1, wslot(27))]
    for m_, (sa, sb) in enumerate(tail):
        n = 78 + m_
        if m_ < 3:
            add_load(sa, vAW, 4 * m_ * FS, n, f"v_add_u32_e64 {v(vAW)}, s45, {v(vAI)}" if m_ == 0 else None)
            add_load(sb, vAW, (4 * m_ + 13) * FS, n)
        else:
            add_load(sa, vAI, 12 * FS, n)
            add_load(sb, vAI, 25 * FS, n)
        pairs.append((sa, sb))
    assert len(pairs) == NP

    def ds(ld, q):
        return f"ds_read_b128 {v(SLOT[ld['slot']] + 4 * q, 4)}, {v(ld['reg'])} offset:{ld['off'] + q * 2 * CS}"
    A(f"v_and_b32 v12, 31, v0")
    A(f"s_lshl_b32 s38, s{sGRP}, 7")
    A(f"s_add_u32 s38, s38, {L_SCALE}")
    A(f"v_lshl_add_u32 v12, v12, 2, s38")
    A("ds_read_b32 v12, v12")
    nfirst = 5
    for ld in loads[:nfirst]:
        assert ld["early"] < 0 and ld["pre"] is None
        A(ds(ld, 0))
        A(ds(ld, 1))
    A(f"s_waitcnt lgkmcnt({2 * nfirst})")
    A(f"v_ldexp_f32 v13, {v(vGC)}, v12")
    A(f"v_add_u32 v14, v12, {v(vW)}")
    A(f"v_add_u32 v15, v12, {v(vQ)}")
    A("v_sub_u32 v14, 0, v14")
    A("v_sub_u32 v15, 0, v15")
    A(f"v_ldexp_f32 {v(vSC)}, 1.0, v14")
    A(f"v_ldexp_f32 {v(vOSC)}, 1.0, v15")
    for k in range(16):
        A(f"v_mul_f32 {v(BIAS + k)}, v13, {v(BIAS + k)}")
    A("s_waitcnt lgkmcnt(0)")
    dsq = [(ld, q) for ld in loads[nfirst:] for q in range(2)]

    def P(n, k):
        sa, sb = pairs[n]
        A(f"v_pk_mul_f16 {v(PROD + k)}, {v(SLOT[sa] + k)}, {v(SLOT[sb] + k)}")

    def F(n, k):
        x = X[n & 1]
        A(f"v_fma_f32 {v(x + k)}, |{v(x + k)}|, {v(RR + k)}, |{v(x + 8 + k)}|")
    tile = lambda T: TILE + 4 * (T % NB)

    sm = []
    NT = NP // 2
    assert sum(cfg.chunks) == NT
    maxq = []
    T0 = 0
    nch = len(cfg.chunks)
    for c, sz in enumerate(cfg.chunks):
        Ts = list(range(T0, T0 + sz))
        T0 += sz
        pend = []
        for T in Ts:
            if T == NT - 1:
                maxq.append((2 * T + 3, 1, f"v_add_f32_e64 {v(tile(T))}, {v(tile(T))}, {v(vMASK)}", T))
            pend.append(T)
            if len(pend) == 2:
                if T == 1:
                    maxq.append((2 * T + 3, 1, f"v_max_f32_e64 {v(vM)}, {v(tile(0))}, {v(tile(1))}", T))
                else:
                    maxq.append((2 * T + 3, 1, f"v_max3_f32 {v(vM)}, {v(tile(pend[0]))}, {v(tile(pend[1]))}, {v(vM)}", T))
                pend = []
        if pend:
            maxq.append((2 * pend[0] + 3, 1, f"v_max_f32_e64 {v(vM)}, {v(tile(pend[0]))}, {v(vM)}", pend[0]))
        ready = 2 * Ts[-1] + 3
        nm = vNM[(nch - 1 - c) & 1]
        old = vNM[(nch - c) & 1]
        sm.append((ready, 1, f"v_mul_f32_e64 {v(nm)}, {v(vM)}, -{v(vSC)}", None, len(maxq)))
        if c:
            sm.append((ready, 1, f"v_sub_f32_e64 {v(old)}, {v(nm)}, {v(old)}", None, 0))
            sm.append((ready, 2, f"v_exp_f32_e64 {v(old)}, {v(old)}", None, 0))
        def head(T):
            t = vT[T & 1]
            sm.append((ready, 1, f"v_fma_f32 {v(t)}, {v(tile(T))}, {v(vSC)}, {v(nm)}", T, 0))
            sm.append((ready, 2, f"v_exp_f32_e64 {v(t)}, {v(t)}", None, 0))

        def tailops(T):
            t = vT[T & 1]
            if T == 0:
                sm.append((ready, 1, f"v_mul_f32_e64 {v(vACC)}, {v(t)}, {v(tile(T) + 1)}", T, 0))
                return
            if T == 1:
                sm.append((ready, 1, f"v_add_f32_e64 {v(vL)}, {v(vT[0])}, {v(vT[1])}", None, 0))
            elif T == Ts[0]:
                sm.append((ready, 1, f"v_fma_f32 {v(vL)}, {v(vL)}, {v(old)}, {v(t)}", None, 0))
            else:
                sm.append((ready, 1, f"v_add_f32_e64 {v(vL)}, {v(vL)}, {v(t)}", None, 0))
            sm.append((ready, 1, f"v_fma_f32 {v(vACC)}, {v(t)}, {v(tile(T) + 1)}, {v(vACC)}", T, 0))
        head(Ts[0])
        if c:
            sm.append((ready, 1, f"v_mul_f32_e64 {v(vACC)}, {v(vACC)}, {v(old)}", None, 0))
        if c == 0:
            head(1)
            tailops(0)
            tailops(1)
            head(2)
            rest = Ts[2:]
        else:
            rest = Ts
        for i, T in enumerate(rest):
            if i + 1 < len(rest):
                head(rest[i + 1])
            tailops(T)
    state = dict(credit=0.0, maxdone=0)

    def softmax_slots(n, budget):
        used = cnt = 0
        while True:
            lim = next((s_[4] for s_ in sm if s_[4]), 10 ** 9)
            if maxq and maxq[0][0] <= n and state["maxdone"] < lim:
                it = maxq.pop(0)
                state["maxdone"] += 1
            elif sm and sm[0][0] <= n and used < budget and (sm[0][4] == 0 or state["maxdone"] >= sm[0][4]):
                it = sm.pop(0)
            else:
                break
            if it[3] is not None:
                assert n < 2 * (it[3] + NB), f"tile {it[3]} read too late in unit {n}"
            A(it[2])
            used += it[1]
            cnt += 1
        return used, cnt

    mh = "v_mfma_f32_32x32x16_f16"
    ml = "v_mfma_f32_16x16x32_f16"
    pre_done = set()

    def free_ds(n, after_p):
        if not dsq:
            return 0
        ld, q = dsq[0]
        ok = ld["early"] < n or (ld["early"] == n and after_p)
        if ok and ld["first"] - n <= 6 and (ld["pre"] is None or id(ld) in pre_done):
            dsq.pop(0)
            A(ds(ld, q))
            return 1
        return 0
    A(".p2align 3")
    for k in range(5):
        P(0, k)
    A("s_nop 0")
    A("s_nop 0")
    A.nopad = True
    for n in range(NP + 1):
        live = n < NP
        x = X[n & 1]
        T = n >> 1
        par = n & 1
        if live:
            A(f"{mh} {v(x, 16)}, {v(WP, 4)}, {v(PROD, 4)}, {v(BIAS, 16)}")
            free_ds(n, False)
            for k in (5, 6, 7):
                P(n, k)
        else:
            A.nopad = False
        if n:
            for k in (0, 1, 2):
                F(n - 1, k)
        if live:
            A(f"{ml} {v(tile(T), 4)}, {v(ALIN + 8 * par, 4)}, {v(PROD, 4)}, {v(tile(T), 4) if par else '0'}")
            free_ds(n, True)
        if n:
            F(n - 1, 3)
            F(n - 1, 4)
        else:
            A("s_nop 0")
            A("s_nop 0")
        if live:
            A(f"{ml} {v(tile(T), 4)}, {v(ALIN + 8 * par + 4, 4)}, {v(PROD + 4, 4)}, {v(tile(T), 4)}")
            free_ds(n, True)
        if n:
            F(n - 1, 5)
            F(n - 1, 6)
        extra = 0
        if live:
            A(f"{mh} {v(x, 16)}, {v(WP + 4, 4)}, {v(PROD + 4, 4)}, {v(x, 16)}")
            extra += free_ds(n, True)
        if n:
            F(n - 1, 7)
        if n + 1 < NP:
            for k in range(5):
                P(n + 1, k)
        elif live:
            softmax_slots(n, 6)
            A.nopad = False
        if n:
            A(f"v_smfmac_f32_16x16x64_bf16 {v(tile((n - 1) >> 1), 4)}, {v(AABS + 4 * ((n - 1) & 1), 4)}, {v(X[(n - 1) & 1], 8)}, {v(vSIDX)}")
        if n + 2 < NP:
            regs = {("v", SLOT[s_] + k) for s_ in pairs[n + 2] for k in range(8)}
            assert not any(ld["first"] <= n + 2 for ld, q in dsq), f"load for pair {n + 2} not issued"
            last = max([i for i, q in enumerate(A.lg) if q[0] & regs], default=-1)
            if last >= 0:
                A(f"s_waitcnt lgkmcnt({len(A.lg) - 1 - last})")
                A("s_nop 0")
                extra += 2
        if dsq and dsq[0][0]["pre"] and id(dsq[0][0]) not in pre_done:
            A(dsq[0][0]["pre"])
            pre_done.add(id(dsq[0][0]))
            extra += 1
        state["credit"] += 3.3
        used, cnt = softmax_slots(n, state["credit"])
        state["credit"] = min(state["credit"] - used, 1.0)
        if live and extra + cnt < (3 if n == 0 else 1):
            A("s_nop 1")
            A("s_nop 0")
    softmax_slots(NP + 1, 10 ** 6)
    if cfg.exp:
        from asmlib import Ins
        i0 = next(i for i, x_ in enumerate(A.ins) if x_.text.startswith("; ---- unit 0"))
        new = []
        for x_ in A.ins[i0:]:
            t_ = x_.text
            if "nolin" in cfg.exp and t_.startswith(ml): continue
            if "nos" in cfg.exp and t_.startswith("v_smfmac"): continue
            if "noF" in cfg.exp and t_.startswith("v_fma_f32") and "|" in t_: continue
            if "noP" in cfg.exp and t_.startswith("v_pk_mul"): continue
            if "noM" in cfg.exp and t_.startswith(mh): continue
            if "nods" in cfg.exp and t_.startswith("ds_read"): continue
            if "addF" in cfg.exp and t_.startswith("v_fma_f32") and "|" in t_:
                o = [q.strip() for q in t_[len("v_fma_f32"):].split(",")]
                t_ = f"v_add_f32_e64 {o[0]}, {o[1]}, {o[3]}"
            if "m16" in cfg.exp and t_.startswith(mh):
                d0 = x_.w[0][1]; b0 = x_.ab[4][1]; hi = 1 if b0 != PROD else 0
                new.append(Ins(f"{ml} {v(d0 + 4 * hi, 4)}, {v(WP, 4)}, {v(b0, 4)}, {v(BIAS, 4)}"))
                pendm = Ins(f"{ml} {v(d0 + 8 + 4 * hi, 4)}, {v(WP + 4, 4)}, {v(b0, 4)}, {v(BIAS + 4, 4)}")
                cntm = 3
                continue
            new.append(Ins(t_))
            if "m16" in cfg.exp and x_.kind == "valu" and pendm is not None:
                cntm -= 1
                if cntm == 0:
                    new.append(pendm); pendm = None
        A.ins[i0:] = new
    assert not sm and not maxq and not dsq
    stamp(7)
    A(f"v_mul_f32 {v(vACC)}, {v(vOSC)}, {v(vACC)}")
    A(f"v_lshlrev_b32 v12, 4, {v(vTID)}")
    A(f"v_add_u32 v12, {L_PART}, v12")
    A("ds_write_b96 v12, v[8:10]")
    A("s_waitcnt lgkmcnt(0)")
    A("s_barrier")
    A(f"s_cmp_lg_u32 s{sW}, 0")
    A("s_cbranch_scc1 " + ("L_dump" if cfg.stamps else "L_end"))
    A("v_lshrrev_b32 v13, 5, v0")
    A(f"v_mul_u32_u24 v13, {(256 - 32) * 16}, v13")
    A("v_add_u32 v12, v12, v13")
    for k in range(8):
        A(f"ds_read_b96 {v(16 + 4 * k, 3)}, v12 offset:{k * 512}")
    A("s_lshl_b32 s3, s2, 7")
    A("v_lshl_add_u32 v1, v0, 1, s3")
    A("s_waitcnt lgkmcnt(0)")
    A("v_min3_f32 v2, v16, v20, v24")
    A("v_min3_f32 v3, v28, v32, v36")
    A("v_min3_f32 v2, v40, v44, v2")
    A("v_min_f32 v2, v2, v3")
    for k in range(8):
        A(f"v_sub_f32 {v(16 + 4 * k)}, v2, {v(16 + 4 * k)}")
    for k in range(8):
        A(f"v_exp_f32 {v(16 + 4 * k)}, {v(16 + 4 * k)}")
    A("v_mul_f32 v3, v16, v17")
    A("v_mul_f32 v4, v16, v18")
    for k in range(1, 8):
        A(f"v_fmac_f32 v3, {v(16 + 4 * k)}, {v(17 + 4 * k)}")
        A(f"v_fmac_f32 v4, {v(16 + 4 * k)}, {v(18 + 4 * k)}")
    A("v_rcp_f32 v3, v3")
    A("v_mul_f32 v3, v3, v4")
    A("v_cvt_pk_bf16_f32 v3, v3, v3")
    A("buffer_store_short v3, v1, s[24:27], 0 offen")
    if cfg.stamps:
        A("L_dump:")
        A("s_waitcnt vmcnt(0)")
        stamp(8)
        A("s_waitcnt lgkmcnt(0)")
        A("s_mov_b64 exec, 1")
        A(f"s_lshl_b32 s3, s2, 3")
        A(f"s_add_u32 s3, s3, s{sW}")
        A(f"s_lshl_b32 s3, s3, 7")
        A("v_mov_b32 v4, s3")
        for i in range(9):
            A(f"v_mov_b32 v2, s{48 + 4 * i}")
            A(f"v_mov_b32 v3, s{50 + 4 * i}")
            A(f"global_store_dwordx2 v4, v[2:3], s[88:89] offset:{8 * i}")
    A("L_end:")
    A("s_endpgm")
    return A


HEAD = """; @launch grid=(256,1,1) block=(512,1,1) lds={lds}
.amdgcn_target "amdgcn-amd-amdhsa--gfx950"
.text
.globl {n}_kernel
.p2align 8
.type {n}_kernel,@function
{n}_kernel:
"""
TAIL = """.section .rodata,"a"
.p2align 6
.amdhsa_kernel {n}_kernel
  .amdhsa_next_free_vgpr 256
  .amdhsa_next_free_sgpr 96
  .amdhsa_accum_offset 256
  .amdhsa_group_segment_fixed_size 0
  .amdhsa_kernarg_size 88
  .amdhsa_user_sgpr_count 2
  .amdhsa_user_sgpr_kernarg_segment_ptr 1
  .amdhsa_system_sgpr_workgroup_id_x 1
.end_amdhsa_kernel
"""

if __name__ == "__main__":
    out = sys.argv[1]
    for kv in sys.argv[2:]:
        k, val = kv.split("=")
        setattr(Cfg, k, eval(val))
    A = gen(Cfg)
    open(out, "w").write(HEAD.format(n=NAME, lds=LDS_BYTES) + A.text() + TAIL.format(n=NAME))
    print("instructions:", sum(i.real for i in A.ins), "pads:", A.pads, "max vgpr:", A.maxv(), "lds:", LDS_BYTES)
```

```python
import re

TRANS = ("v_exp_", "v_log_", "v_rcp_", "v_rsq_", "v_sqrt_", "v_sin_", "v_cos_")


def regs_of(tok):
    tok = tok.strip()
    tok = tok.lstrip("-").strip("|")
    m = re.fullmatch(r"([vas])(\d+)", tok)
    if m:
        return [(m.group(1), int(m.group(2)))]
    m = re.fullmatch(r"([vas])\[(\d+):(\d+)\]", tok)
    if m:
        return [(m.group(1), i) for i in range(int(m.group(2)), int(m.group(3)) + 1)]
    if tok == "vcc":
        return [("s", 106), ("s", 107)]
    if tok == "exec":
        return [("s", 126), ("s", 127)]
    if tok == "m0":
        return [("s", 124)]
    return []


class Ins:
    def __init__(self, text):
        self.text = text
        body = text.split(";")[0].strip()
        self.is_label = body.endswith(":")
        self.is_dir = body.startswith(".") and not self.is_label
        self.real = bool(body) and not self.is_label and not self.is_dir
        self.op = body.split()[0] if body else ""
        self.w, self.r, self.srcc, self.ab = [], [], [], []
        self.passes = 0
        self.kind = "none"
        if not self.real:
            return
        rest = body[len(self.op):].strip()
        ops = [t.strip() for t in re.split(r",(?![^\[]*\])", rest)] if rest else []
        if ops:
            last = ops[-1].split()
            ops[-1] = last[0] if last else ""
            self.mods = " ".join(last[1:])
        else:
            self.mods = ""
        op = self.op
        R = [regs_of(t) for t in ops]
        if op.startswith("v_mfma") or op.startswith("v_smfmac"):
            self.kind = "mfma"
            self.passes = 8 if "32x32" in op else (2 if "4x4" in op else 4)
            self.w = R[0]
            if op.startswith("v_smfmac"):
                self.ab = R[1] + R[2] + R[3]
                self.srcc = R[0]
            else:
                self.ab = R[1] + R[2]
                self.srcc = R[3]
            self.r = self.ab + self.srcc
        elif op.startswith("v_"):
            self.kind = "valu"
            self.w = list(R[0])
            self.r = [x for rr in R[1:] for x in rr]
            if op.startswith("v_permlane") and "swap" in op:
                self.w = R[0] + R[1]
                self.r = R[0] + R[1]
            if op.startswith(("v_fmac", "v_dot2c", "v_writelane")) or "_dpp" in op or "PRESERVE" in self.mods:
                self.r = self.r + R[0]
            if op.startswith("v_cmpx"):
                self.w = self.w + regs_of("exec")
        elif op.startswith(("buffer_load", "global_load")):
            self.kind = "vmem"
            if " lds" in " " + self.mods:
                self.r = [x for rr in R for x in rr]
            else:
                self.w = R[0]
                self.r = [x for rr in R[1:] for x in rr]
        elif op.startswith(("buffer_store", "global_store", "buffer_atomic", "global_atomic")):
            self.kind = "vmem"
            self.r = [x for rr in R for x in rr]
        elif op.startswith(("ds_read", "ds_bpermute", "ds_swizzle")) or re.match(r"ds_\w+_rtn_", op):
            self.kind = "ds"
            self.w = R[0]
            self.r = [x for rr in R[1:] for x in rr]
        elif op.startswith("ds_"):
            self.kind = "ds"
            self.r = [x for rr in R for x in rr]
        elif op.startswith(("s_load", "s_memtime", "s_memrealtime")):
            self.kind = "smem"
            self.w = R[0]
            self.r = [x for rr in R[1:] for x in rr]
        elif op.startswith(("s_cmp", "s_bitcmp")):
            self.kind = "salu"
            self.r = [x for rr in R for x in rr]
        elif op.startswith(("s_waitcnt", "s_nop", "s_barrier", "s_branch", "s_cbranch", "s_endpgm", "s_setprio", "s_sleep")):
            self.kind = "ctl"
        elif op.startswith("s_"):
            self.kind = "salu"
            self.w = list(R[0])
            self.r = [x for rr in R[1:] for x in rr]
            if "saveexec" in op:
                self.w = self.w + regs_of("exec")
        else:
            raise ValueError("unknown op " + text)

    def states(self):
        if self.op == "s_nop":
            return int(self.text.split(";")[0].split()[1]) + 1
        return 1


def need(p, c, c_covered=False):
    n = 0
    pw, cr, cw = set(p.w), set(c.r), set(c.w)
    if p.kind == "valu":
        vw = {x for x in pw if x[0] != "s"}
        sw = {x for x in pw if x[0] == "s"}
        if c.kind == "mfma" and vw & cr:
            n = max(n, 2)
        if c.kind == "valu":
            if ("_dpp" in c.op or c.op.startswith("v_permlane")) and vw & cr:
                n = max(n, 2)
            if c.op.startswith(("v_readlane", "v_readfirstlane")) and vw & cr:
                n = max(n, 1)
            if p.op.startswith(TRANS) and vw & cr:
                n = max(n, 1)
            if ("sdwa" in p.op or "op_sel" in p.mods) and vw & (cr | cw):
                n = max(n, 1)
            if sw & cr:
                n = max(n, 4 if c.op.startswith(("v_readlane", "v_writelane")) else 2)
            if ("s", 126) in sw:
                n = max(n, 5)
            if p.op.startswith("v_dot") and vw & (cr | cw):
                n = max(n, 3)
        if c.kind == "mfma" and ("s", 126) in sw:
            n = max(n, 4)
        if c.kind == "vmem" and sw & cr:
            n = max(n, 5)
        if c.kind in ("salu", "smem") and sw & cr:
            n = max(n, 2)
    if p.kind == "mfma":
        full = {2: 5, 4: 8, 8: 12}[p.passes]
        if c.kind in ("valu", "vmem", "ds") and pw & (cr | cw):
            n = max(n, full)
        if c.kind == "mfma":
            if pw & set(c.ab):
                n = max(n, full)
            if pw & set(c.srcc):
                same = list(p.w) == list(c.srcc) and p.passes == c.passes and p.passes >= 4
                if not same and not (c_covered and p.passes == c.passes):
                    n = max(n, p.passes + 2)
            elif pw & cw and p.passes != c.passes:
                n = max(n, p.passes + 2)
        if c.kind == "valu" and set(p.srcc) & cw:
            n = max(n, p.passes - 1)
    if p.kind == "vmem" and "store" in p.op and ("x4" in p.op or "x3" in p.op):
        if c.kind == "valu" and set(p.r) & cw:
            n = max(n, 2)
    if p.kind == "salu" and ("s", 124) in pw and (c.kind in ("vmem", "ds")):
        n = max(n, 1)
    return n


class Asm:
    def __init__(self):
        self.ins = []
        self.nopad = False
        self.vm = []
        self.lg = []
        self.pads = 0

    def raw(self, text):
        self.ins.append(Ins(text))

    def comment(self, text):
        self.ins.append(Ins("; " + text))

    def __call__(self, text):
        for line in text.strip("\n").split("\n"):
            self._one(line.strip())

    def _one(self, text):
        c = Ins(text)
        if c.real:
            dist, lack, cov = 0, 0, False
            for p in reversed(self.ins):
                if not p.real:
                    continue
                k = need(p, c, cov)
                if c.kind == "mfma" and p.kind == "mfma" and c.srcc and list(p.w) == list(c.srcc) and p.passes == c.passes:
                    cov = True
                if k > dist and k - dist > lack:
                    lack, who = k - dist, p
                dist += p.states()
                if dist >= 20:
                    break
            if lack:
                if self.nopad:
                    raise RuntimeError(f"hazard: '{who.text}' -> '{text}' lacks {lack}")
                self.ins.append(Ins(f"s_nop {lack - 1}"))
                self.pads += lack
            touched = set(c.r) | set(c.w)
            for q in self.vm + self.lg:
                if q[0] & touched:
                    raise RuntimeError(f"missing waitcnt: '{q[1]}' -> '{text}'")
            if c.op == "s_waitcnt":
                m = re.search(r"vmcnt\((\d+)\)", text)
                if m:
                    n = int(m.group(1))
                    self.vm = self.vm[len(self.vm) - n:] if n and n < len(self.vm) else ([] if n == 0 else self.vm)
                m = re.search(r"lgkmcnt\((\d+)\)", text)
                if m:
                    n = int(m.group(1))
                    assert n <= 15
                    if n and any(q[2] == "smem" for q in self.lg):
                        raise RuntimeError("counted lgkmcnt with smem outstanding")
                    self.lg = self.lg[len(self.lg) - n:] if n and n < len(self.lg) else ([] if n == 0 else self.lg)
            if c.kind == "vmem":
                self.vm.append((set(c.w), text, "vmem"))
            if c.kind in ("ds", "smem"):
                self.lg.append((set(c.w), text, c.kind))
        self.ins.append(c)

    def wait_vm_for(self, regs):
        regs = set(regs)
        last = max([i for i, q in enumerate(self.vm) if q[0] & regs], default=-1)
        if last >= 0:
            self(f"s_waitcnt vmcnt({len(self.vm) - 1 - last})")

    def text(self):
        out = []
        for i in self.ins:
            out.append(i.text if (i.is_label or i.is_dir) else "    " + i.text)
        return "\n".join(out) + "\n"

    def maxv(self):
        return max(x[1] for i in self.ins for x in i.w + i.r if x[0] == "v")


def size_of(i):
    op, t = i.op, i.text.split(";")[0]
    if i.kind in ("mfma", "vmem", "ds", "smem"):
        return 8
    lit = False
    for tok in re.split(r"[,\s]+", t)[1:]:
        if re.fullmatch(r"-?(0x[0-9a-f]+|\d+)", tok):
            val = int(tok, 0)
            if not -16 <= val <= 64:
                lit = True
    if i.kind == "ctl" or op in ("s_movk_i32",):
        return 4
    if i.kind == "salu":
        return 8 if lit else 4
    if op.endswith(("_e64", "_dpp", "_sdwa")) or op.startswith("v_pk_") or "|" in t:
        return 8
    vop12 = ("v_mov_b32", "v_add_f32", "v_sub_f32", "v_mul_f32", "v_fmac_f32", "v_max_f32", "v_min_f32", "v_exp_f32",
             "v_rcp_f32", "v_add_u32", "v_sub_u32", "v_subrev_u32", "v_and_b32", "v_or_b32", "v_xor_b32", "v_lshlrev_b32",
             "v_lshrrev_b32", "v_mul_u32_u24", "v_min_u32", "v_max_u32", "v_min_i32", "v_max_i32", "v_readfirstlane_b32",
             "v_permlane16_swap_b32", "v_permlane32_swap_b32", "v_cndmask_b32", "v_mov_b64", "v_ashrrev_i32")
    if op.replace("_e32", "") in vop12:
        return 8 if lit else 4
    return 8


def simulate(ins):
    t = pipe = stall = 0
    vfree = 0
    for i in ins:
        if not i.real:
            continue
        if i.kind == "mfma":
            st = max(t, vfree)
            if pipe > st:
                stall += pipe - st
                st = pipe
            n = max(len(i.ab) // 2, 2)
            cost = 12 if i.op.startswith("v_smfmac") else (8 if len(i.ab) >= 8 else 4)
            vfree = st + cost
            pipe = st + 4 * i.passes
            t = st + 4
        elif i.kind == "valu":
            st = max(t, vfree)
            cost = 8 if i.op.startswith(TRANS) or i.op.startswith("v_permlane") else 4
            vfree = t = st + cost
        elif i.kind == "ds":
            t += 20 if "write_b128" in i.op else 8
        elif i.kind == "vmem":
            t += 16
        else:
            t += 4 * i.states()
    return max(t, vfree), stall
```

```python
import sys, struct, math
from asmlib import Asm, Ins, size_of, simulate

NAME = "standalone__factorization_afm__recsys"
FS = 640
CS = 160
BS = 26 * FS
WS = 2 * BS
LDS_BYTES = 4 * WS
UB = 82
NP = 2 * UB


def f32(x):
    return "0x%08x" % struct.unpack("<I", struct.pack("<f", x))[0]


def v(a, n=1):
    return f"v{a}" if n == 1 else f"v[{a}:{a + n - 1}]"


def a_(a, n=1):
    return f"a{a}" if n == 1 else f"a[{a}:{a + n - 1}]"


def lanemask(fn):
    m = 0
    for l in range(64):
        if fn(l):
            m |= 1 << l
    return m


class Cfg:
    chunks = [[7, 7, 7, 7, 7, 6], [7, 7, 7, 7, 7, 6]]
    NB = 11
    stamps = False
    gflags = ""
    D0 = 7
    nstart = 4
    lead = 4
    lead2 = 8
    gpace = 3
    rate = 3.1
    codepf = True
    comp = 1.0028
    target = 3


def gen(cfg=Cfg):
    A = Asm()
    NB = cfg.NB
    vAI, vA0, vAM, vW1, vW3, vCH, vGA, vSIDX, vMASK, vM = 1, 2, [None, 3, 4, 5], 6, 7, 8, [9, 10], 11, 12, 13
    vT = [14, 15]
    vNM, vL, vACC = [[16, 17], [20, 21]], [18, 22], [19, 23]
    IDX, PH, PL, X = 24, 32, [36, 40], [44, 60]
    BIAS, RR, WP, ALIN, AABS, SEL, CV, TILE = 76, 92, 100, 108, 124, 132, 136, 152
    S0 = TILE + 2 * NB + 2
    NS = (256 - S0) // 8
    SLOT = [S0 + 8 * i for i in range(NS)]
    assert NS >= 10
    WRAW, HRAW, BRAW, PRAW, SEL1, DH, DP, G0 = SLOT[0], SLOT[1], SLOT[2], SLOT[3], SLOT[4], SLOT[5], SLOT[7], SLOT[9]
    HS, HL = G0 + 4, G0 + 6
    DW, DU = X
    SH = CV
    sW, sADJ, sK, sWW, sQ, sSC, sOSC, sGC = 28, 29, 30, 31, 46, 47, 48, 49
    sDONE = 50
    sSELM = 32
    mf = "v_mfma_f32_32x32x16_bf16"
    mh = "v_mfma_f32_32x32x16_f16"
    ml = "v_mfma_f32_16x16x32_f16"

    def smask(reg, m):
        A(f"s_mov_b32 s{reg}, 0x{m & 0xffffffff:08x}")
        A(f"s_mov_b32 s{reg + 1}, 0x{m >> 32:08x}")
    nst = [0]

    def stamp():
        if cfg.stamps:
            i = nst[0]
            nst[0] += 1
            A.raw(f"s_memtime s[{56 + 4 * i}:{57 + 4 * i}]")
            A.raw(f"s_memrealtime s[{58 + 4 * i}:{59 + 4 * i}]")
            if A.lg or i >= 3:
                A("s_waitcnt lgkmcnt(0)")
                A("s_nop 0")

    A("s_cmp_ge_u32 s2, 256")
    A("s_cbranch_scc1 L_end")
    A("s_load_dwordx4 s[4:7], s[0:1], 0")
    A("s_load_dwordx8 s[8:15], s[0:1], 32")
    A("s_load_dwordx2 s[16:17], s[0:1], 64")
    if cfg.stamps:
        A("s_load_dwordx2 s[18:19], s[0:1], 80")
        A.raw("s_memtime s[56:57]")
        A.raw("s_memrealtime s[58:59]")
        nst[0] = 1
    A("v_lshrrev_b32 v1, 6, v0")
    A(f"s_mov_b32 s{sADJ}, 0")
    A(f"v_readfirstlane_b32 s{sW}, v1")
    A(f"s_mov_b64 s[{sDONE}:{sDONE + 1}], 0")
    if cfg.codepf:
        A("s_getpc_b64 s[40:41]")
        A("L_pc:")
        A("s_bitcmp1_b32 s2, 3")
        A("s_cselect_b32 s3, 0x8000, 0")
        A("v_lshl_add_u32 v1, v0, 7, s3")
        A("v_min_u32 v1, L_end-L_pc, v1")
        A("global_load_dword a0, v1, s[40:41]")
    A("L_retry:")
    A("v_and_b32 v13, 63, v0")
    A("v_lshrrev_b32 v14, 5, v13")
    A(f"v_and_b32 {v(vCH)}, 3, v0")
    A(f"v_lshlrev_b32 {v(vCH)}, 4, {v(vCH)}")
    A("v_bfe_u32 v15, v0, 2, 3")
    A("v_lshl_add_u32 v16, v15, 1, v14")
    A("v_mul_u32_u24 v16, 52, v16")
    A(f"v_min_u32 v17, 36, {v(vCH)}")
    A("s_lshl_b32 s3, s2, 2")
    A(f"s_add_u32 s3, s3, s{sW}")
    A("s_mul_i32 s42, s3, 1664")
    A("v_add3_u32 v16, v16, v17, s42")
    A("v_and_b32 v17, 19, v0")
    A("v_and_b32 v18, 4, v0")
    A("v_lshl_or_b32 v17, v18, 1, v17")
    A("v_and_b32 v18, 8, v0")
    A("v_lshrrev_b32 v18, 1, v18")
    A("v_or_b32 v17, v17, v18")
    A("v_lshlrev_b32 v18, 4, v14")
    A("v_lshl_or_b32 v19, v17, 6, v18")
    A("v_lshlrev_b32 v17, 1, v17")
    A("v_and_b32 v20, 16, v0")
    A("v_lshl_or_b32 v20, v14, 3, v20")
    A(f"v_mov_b32 {v(HL)}, 0")
    pre = [
        f"s_mul_i32 s43, s{sW}, {WS}",
        f"v_mul_u32_u24 v21, 10, {v(vCH)}",
        "v_lshl_add_u32 v21, v15, 4, v21",
        f"v_mul_u32_u24 v22, {FS}, v14",
        f"v_add3_u32 {v(vW1)}, v21, v22, s43",
        f"v_lshl_add_u32 {v(vW3)}, v22, 1, {v(vW1)}",
        f"v_mul_u32_u24 v21, {CS}, v14",
        "v_and_b32 v22, 7, v0",
        "v_lshlrev_b32 v22, 4, v22",
        f"v_add3_u32 {v(vAI)}, v21, v22, s43",
        "v_bfe_u32 v21, v0, 3, 2",
        f"s_movk_i32 s44, {FS}",
        f"v_mad_u32_u24 {v(vA0)}, v21, s44, {v(vAI)}",
    ]
    for c in (1, 2, 3):
        pre += [f"v_subrev_u32 v22, {c}, v21", "v_and_b32 v22, 7, v22", f"v_mad_u32_u24 {v(vAM[c])}, v22, s44, {v(vAI)}"]
    for t in pre:
        A(t)
    A("s_waitcnt lgkmcnt(0)")
    A(f"global_load_dwordx4 {v(IDX, 4)}, v16, s[4:5]")
    A(f"global_load_dwordx4 {v(WRAW, 4)}, v19, s[8:9]")
    A(f"global_load_dwordx4 {v(WRAW + 4, 4)}, v19, s[8:9] offset:32")
    A(f"global_load_dwordx4 {v(HRAW, 4)}, v18, s[12:13]")
    A(f"global_load_dwordx4 {v(HRAW + 4, 4)}, v18, s[12:13] offset:32")
    A(f"global_load_dwordx4 {v(PRAW, 4)}, v18, s[14:15]")
    A(f"global_load_dwordx4 {v(PRAW + 4, 4)}, v18, s[14:15] offset:32")
    A(f"global_load_dwordx4 {v(BRAW, 4)}, v18, s[10:11]")
    A(f"global_load_dwordx4 {v(BRAW + 4, 4)}, v18, s[10:11] offset:32")
    A(f"global_load_short_d16_hi {v(HL)}, v17, s[12:13]")
    A(f"global_load_dwordx2 {v(HS, 2)}, v20, s[12:13] offset:32")
    A(f"global_load_dwordx4 {v(IDX + 4, 4)}, v16, s[4:5] offset:832")
    stamp()
    A("s_mov_b32 s20, s6")
    A("s_mov_b32 s21, s7")
    A("s_mov_b32 s22, 6400000")
    A("s_mov_b32 s23, 0x00020000")
    A("s_mov_b32 s24, s16")
    A("s_mov_b32 s25, s17")
    A("s_mov_b32 s26, 32768")
    A("s_mov_b32 s27, 0x00020000")
    A(f"v_and_b32 {v(SH)}, 1, v0")
    A(f"v_lshlrev_b32 {v(SH)}, 4, {v(SH)}")
    A("s_movk_i32 s44, 0x3f80")
    A(f"v_lshlrev_b32_e64 v21, {v(SH)}, s44")
    for R in (4, 5, 6, 7, 0, 1, 2, 3):
        m = lanemask(lambda l: (l >> 5) == ((l >> 2) & 1) and ((l >> 1) & 1) + 2 * ((l >> 3) & 3) == R)
        sm_ = sSELM + 2 * (R & 3)
        smask(sm_, m)
        A(f"v_cndmask_b32_e64 {v(SEL1 + R)}, 0, v21, s[{sm_}:{sm_ + 1}]")
    A(f"v_mov_b32 {v(vSIDX)}, 0xdddd")
    A("v_mov_b32 v21, 0xff800000")
    smask(40, lanemask(lambda l: 8 <= l < 32))
    A(f"v_cndmask_b32_e64 {v(vMASK)}, 0, v21, s[40:41]")

    def g_addr(t):
        b, tt = divmod(t, 13)
        ql, k = (tt // 4, tt % 4) if tt < 12 else (3, 3)
        return f"v_add_u32_dpp {v(vGA[t & 1])}, {v(IDX + 4 * b + k)}, {v(vCH)} quad_perm:[{ql},{ql},{ql},{ql}] row_mask:0xf bank_mask:0xf"
    greg = lambda t: v(G0, 4) if t == 0 else a_(4 * t, 4)
    gkey = lambda t: ("v", G0) if t == 0 else ("a", 4 * t)

    def g_load(t):
        return f"buffer_load_dwordx4 {greg(t)}, {v(vGA[t & 1])}, s[20:23], 0 offen {cfg.gflags}".strip()
    A.wait_vm_for([("v", IDX)])
    stamp()
    for k in range(4):
        A(f"v_lshlrev_b32 {v(IDX + k)}, 6, {v(IDX + k)}")
    for t in range(cfg.D0):
        A(g_addr(t))
        A(g_load(t))
    gnext = [cfg.D0]
    A.wait_vm_for([("v", IDX + 4)])
    stamp()
    A(f"{mf} {v(DW, 16)}, {v(WRAW, 4)}, {v(SEL1, 4)}, 0")
    A(f"{mf} {v(DW, 16)}, {v(WRAW + 4, 4)}, {v(SEL1 + 4, 4)}, {v(DW, 16)}")
    for k in range(4):
        A(f"v_lshlrev_b32 {v(IDX + 4 + k)}, 6, {v(IDX + 4 + k)}")
    A(f"{mf} {v(DP, 16)}, {v(SEL1, 4)}, {v(PRAW, 4)}, 0")
    A("s_mov_b32 s44, 0x80008000")
    A("v_mov_b32 v21, 0x3f803f80")
    for k in range(2):
        A(f"v_and_or_b32 {v(HS + k)}, {v(HS + k)}, s44, v21")
    A(f"{mf} {v(DP, 16)}, {v(SEL1 + 4, 4)}, {v(PRAW + 4, 4)}, {v(DP, 16)}")
    rest_m = [
        f"{mf} {v(DH, 16)}, {v(SEL1, 4)}, {v(HRAW, 4)}, 0",
        f"{mf} {v(DH, 16)}, {v(SEL1 + 4, 4)}, {v(HRAW + 4, 4)}, {v(DH, 16)}",
        f"{mf} {v(BIAS, 16)}, {v(SEL1, 4)}, {v(BRAW, 4)}, 0",
        f"{mf} {v(BIAS, 16)}, {v(SEL1 + 4, 4)}, {v(BRAW + 4, 4)}, {v(BIAS, 16)}",
        f"{mf} {v(DU, 16)}, {v(WRAW, 4)}, {v(HRAW, 4)}, 0",
        f"{mf} {v(DU, 16)}, {v(WRAW + 4, 4)}, {v(HRAW + 4, 4)}, {v(DU, 16)}",
    ]
    for par in range(2):
        for sg in range(2):
            smask(40 + 2 * sg, lanemask(lambda l: (l & 15) == 8 * par + 4 * sg))
            for k in range(2):
                A(f"v_cndmask_b32_e64 {v(AABS + 4 * par + 2 * sg + k)}, 0, {v(HS + k)}, s[{40 + 2 * sg}:{41 + 2 * sg}]")
        A(rest_m.pop(0))
    A(f"v_max_f32_e64 v13, |{v(DW)}|, |{v(DW + 1)}|")
    for k in range(1, 8):
        A(f"v_max3_f32 v13, |{v(DW + 2 * k)}|, |{v(DW + 2 * k + 1)}|, v13")
        if k == 5:
            A(rest_m.pop(0))
    A(f"v_mul_f32_e64 v13, v13, |{v(HL)}|")
    fill = [f"v_max_f32_e64 v14, |{v(DP)}|, |{v(DP + 1)}|"]
    fill += [f"v_max3_f32 v14, |{v(DP + 2 * k)}|, |{v(DP + 2 * k + 1)}|, v14" for k in range(1, 8)]
    fill += ["v_mov_b32 v15, v14"]
    fill += [f"v_xor_b32 {v(RR + k)}, {v(DH + k)}, {v(DH + 8 + k)}" for k in range(8)]

    def filler(n=2):
        for _ in range(n):
            if fill:
                A(fill.pop(0))
    for i, ctl in enumerate(("quad_perm:[1,0,3,2]", "quad_perm:[2,3,0,1]", "row_half_mirror", "row_mirror")):
        filler()
        A(f"v_max_f32_dpp v13, v13, v13 {ctl} row_mask:0xf bank_mask:0xf")
        if i & 1 == 0:
            A(rest_m.pop(0))
    A("v_mov_b32 v16, v13")
    filler()
    A("v_permlane16_swap_b32 v13, v16")
    A(rest_m.pop(0))
    A("v_max_f32 v13, v13, v16")
    A("v_permlane32_swap_b32 v14, v15")
    A("v_mov_b32 v16, v13")
    A("v_max_f32 v14, v14, v15")
    filler(1)
    A("v_permlane32_swap_b32 v13, v16")
    A(f"v_readfirstlane_b32 s{sQ}, v14")
    A("v_max_f32 v13, v13, v16")
    filler(1)
    A(f"v_readfirstlane_b32 s{sWW}, v13")
    filler(16)
    assert not rest_m
    A(f"s_lshr_b32 s{sQ}, s{sQ}, 23")
    A(f"s_sub_i32 s{sQ}, 141, s{sQ}")
    A(f"s_min_i32 s{sQ}, s{sQ}, 40")
    A(f"s_lshl_b32 s44, s{sQ}, 23")
    A("s_add_u32 s44, s44, 0x3f800000")
    A(f"s_lshr_b32 s{sWW}, s{sWW}, 23")
    A(f"s_sub_i32 s{sWW}, 136, s{sWW}")
    A(f"s_min_i32 s{sWW}, s{sWW}, 40")
    A(f"s_lshl_b32 s45, s{sWW}, 23")
    A(f"s_add_u32 s{sGC}, s45, {f32(0.5 * math.log2(math.e) * cfg.comp)}")
    A(f"s_add_u32 s45, s45, {f32(0.5 * math.log2(math.e))}")
    A(f"v_mul_f32_e64 v13, s{sGC}, |{v(HL)}|")
    smask(40, lanemask(lambda l: l & 1))
    A("v_mov_b32 v14, s45")
    A("v_mov_b32 v15, s44")
    A("v_cndmask_b32_e64 v14, v14, v15, s[40:41]")
    for k in range(16):
        A(f"v_mul_f32 {v(DW + k)}, v13, {v(DW + k)}")
        A(f"v_cndmask_b32_e64 {v(DU + k)}, {v(DU + k)}, {v(DP + k)}, s[40:41]")
    smask(40, lanemask(lambda l: ((l >> 3) & 1) == 0 and not (l & 2) and ((l >> 2) & 1) == ((l >> 4) & 1)))
    smask(42, lanemask(lambda l: ((l >> 3) & 1) == 1 and not (l & 2) and ((l >> 2) & 1) == ((l >> 4) & 1)))
    A("s_brev_b32 s44, 1")
    for k in range(16):
        A(f"v_mul_f32 {v(DU + k)}, v14, {v(DU + k)}")
        A(f"v_mul_f32_e64 {v(BIAS + k)}, {v(BIAS + k)}, |{v(DH + k)}|")
    for k in range(8):
        A(f"v_cvt_pk_f16_f32 {v(DU + k)}, {v(DU + 2 * k)}, {v(DU + 2 * k + 1)}")
        A(f"v_cvt_pk_f16_f32 {v(WP + k)}, {v(DW + 2 * k)}, {v(DW + 2 * k + 1)}")
        A(f"v_cndmask_b32_e64 {v(ALIN + k)}, 0, {v(DU + k)}, s[40:41]")
        A(f"v_cndmask_b32_e64 {v(ALIN + 8 + k)}, 0, {v(DU + k)}, s[42:43]")
        A(f"v_and_or_b32 {v(RR + k)}, {v(RR + k)}, s44, 1.0")
    stamp()
    A.wait_vm_for([gkey(0)])
    stamp()
    neg = "neg_lo:[0,1,0] neg_hi:[0,1,0]"
    A(f"v_pk_maximum3_f16 v13, {v(G0)}, {v(G0)}, 0 {neg}")
    A(f"v_pk_maximum3_f16 v14, {v(G0 + 1)}, {v(G0 + 1)}, 0 {neg}")
    A(f"v_pk_maximum3_f16 v13, {v(G0 + 2)}, {v(G0 + 2)}, v13 {neg}")
    A(f"v_pk_maximum3_f16 v14, {v(G0 + 3)}, {v(G0 + 3)}, v14 {neg}")
    A("v_pk_max_u16 v13, v13, v14")
    A("v_max_u32_sdwa v13, v13, v13 dst_sel:DWORD dst_unused:UNUSED_PAD src0_sel:WORD_0 src1_sel:WORD_1")
    A(g_addr(gnext[0]))
    A(g_load(gnext[0]))
    gnext[0] += 1
    A("v_max_u32_dpp v13, v13, v13 quad_perm:[1,0,3,2] row_mask:0xf bank_mask:0xf")
    A("v_max_u32_dpp v13, v13, v13 quad_perm:[2,3,0,1] row_mask:0xf bank_mask:0xf")
    A("v_mov_b32 v14, v13")
    A("v_permlane32_swap_b32 v13, v14")
    A("v_max_u32 v13, v13, v14")
    A("v_add_u32 v13, -1, v13")
    A("v_min_u32_dpp v13, v13, v13 row_ror:4 row_mask:0xf bank_mask:0xf")
    A("v_min_u32_dpp v13, v13, v13 row_ror:8 row_mask:0xf bank_mask:0xf")
    A("v_readlane_b32 s44, v13, 0")
    A("v_readlane_b32 s45, v13, 16")
    A("s_min_u32 s44, s44, s45")
    A("s_add_u32 s44, s44, 1")
    A("s_bfe_u32 s44, s44, 0x80007")
    A(f"s_sub_i32 s{sK}, {127 + cfg.target}, s44")
    A(f"s_min_i32 s{sK}, s{sK}, 40")
    A(f"s_sub_i32 s{sK}, s{sK}, s{sADJ}")
    A(f"s_max_i32 s{sK}, s{sK}, -64")
    A(f"s_add_i32 s44, s{sK}, 127")
    A("s_lshl_b32 s44, s44, 7")
    A(f"v_lshlrev_b32_e64 v13, {v(SH)}, s44")
    for R in range(4):
        A(f"v_cndmask_b32_e64 {v(SEL + R)}, 0, v13, s[{sSELM + 2 * R}:{sSELM + 2 * R + 1}]")

    gpos = []
    vecs = []
    pairs = []
    CC = [0, 1, -1, 2, -2, 3, -3, 4]
    for b in range(2):
        g0, base = 13 * b, b * BS
        gpos.append((vW1, base))
        def vec(reg, pos, g):
            vecs.append(dict(reg=reg, off=base + pos * FS, g=g, slot=None, issued=0))
            return vecs[-1]
        I = [vec(vAI, 0, g0), vec(vAI, 1, g0)]
        pairs.append((I[0], I[1]))
        reps = []
        for bb in range(3):
            p0, gb = 2 + 8 * bb, g0 + 1 + 4 * bb
            gpos.extend([(vW1, base + p0 * FS), (vW1, base + (p0 + 2) * FS), (vW3, base + (p0 + 4) * FS), (vW1, base + (p0 + 5) * FS)])
            prev, mine = None, []
            for k, c in enumerate(CC):
                g = gb + (1 if k == 0 else 2 if k < 3 else 3)
                x = vec(vA0, p0 + c, g) if c >= 0 else vec(vAM[-c], p0, g)
                if prev is not None:
                    pairs.append((prev, x))
                for r in reps:
                    pairs.append((x, r))
                if k in (0, 7):
                    pairs.extend([(x, I[0]), (x, I[1])])
                    mine.append(x)
                prev = x
            reps += mine
    assert len(pairs) == NP and len(gpos) == 26
    for n, pr in enumerate(pairs):
        for x in pr:
            x.setdefault("first", n)
            x["last"] = n
    need = [min(x["first"] for x in vecs if x["g"] >= t) for t in range(26)]
    convU = [None] * 26
    nxt = 10 ** 9
    for t in range(25, -1, -1):
        lead = cfg.lead if t < 9 else cfg.lead2
        convU[t] = min(need[t] - lead, nxt - (1 if t < 9 else 2))
        if t < cfg.nstart:
            convU[t] = -1
        assert t < cfg.nstart or convU[t] >= 0, (t, convU[t])
        nxt = convU[t]
    cur = [-1]
    written = [-1]
    free = list(range(NS))
    rq = [(x, q) for x in vecs for q in range(2)]

    def c_ops(d):
        return [f"v_cvt_pk_f16_f32 {v(d + k)}, {v(d + 2 * k)}, {v(d + 2 * k + 1)}" for k in range(4)]

    def c_m(t, d):
        return f"{mf} {v(d, 16)}, {v(SEL, 4)}, {greg(t)}, 0"

    def c_w(t, d):
        written[0] = t
        return f"ds_write_b128 {v(gpos[t][0])}, {v(d, 4)} offset:{gpos[t][1]}"

    def can_read():
        if not rq:
            return False
        x, q = rq[0]
        return x["g"] <= written[0] and (x["slot"] is not None or bool(free))

    def do_read():
        x, q = rq.pop(0)
        if x["slot"] is None:
            x["slot"] = free.pop(0)
        x["issued"] += 1
        x["at"] = cur[0]
        A(f"ds_read_b128 {v(SLOT[x['slot']] + 4 * q, 4)}, {v(x['reg'])} offset:{x['off'] + q * 2 * CS}")

    late = [f"v_mul_f32 {v(BIAS + k)}, v14, {v(BIAS + k)}" for k in range(16)]
    win = [CV, X[0], X[1]]
    A(c_m(0, win[0]))
    A(f"s_lshl_b32 s44, s{sK}, 1")
    A(f"v_mov_b32 v14, s{sGC}")
    A(f"s_add_i32 s45, s44, s{sWW}")
    A("v_ldexp_f32 v14, v14, s44")
    A("s_sub_i32 s45, 127, s45")
    A("s_min_i32 s45, s45, 255")
    A(f"s_lshl_b32 s{sSC}, s45, 23")
    A(f"s_add_i32 s45, s44, s{sQ}")
    A("s_sub_i32 s45, 127, s45")
    A("s_min_i32 s45, s45, 255")
    A(f"s_lshl_b32 s{sOSC}, s45, 23")
    for t in range(1, cfg.nstart + 1):
        if t < cfg.nstart:
            A.wait_vm_for([gkey(t)])
            A(c_m(t, win[t % 3]))
            A(g_addr(gnext[0]))
            A(g_load(gnext[0]))
            gnext[0] += 1
        k = len(late) if t == cfg.nstart else 4
        if t > 1:
            for o in late[:k]:
                A(o)
            late = late[k:]
        for o in c_ops(win[(t - 1) % 3]):
            A(o)
        A(c_w(t - 1, win[(t - 1) % 3]))
        while can_read():
            do_read()
    stamp()

    def P(n, k):
        xa, xb = pairs[n]
        d = PL[n & 1] + k if k < 4 else PH + k - 4
        A(f"v_pk_mul_f16 {v(d)}, {v(SLOT[xa['slot']] + k)}, {v(SLOT[xb['slot']] + k)}")

    def F(n, k):
        x = X[n & 1]
        A(f"v_fma_f32 {v(x + k)}, |{v(x + k)}|, {v(RR + k)}, |{v(x + 8 + k)}|")
    tile = lambda T: TILE + 2 * (T % NB)

    sm, maxq = [], []
    for b in range(2):
        T0 = 41 * b
        chunks = cfg.chunks[b]
        assert sum(chunks) == 41
        nch = len(chunks)
        L_, ACC = vL[b], vACC[b]
        for c, sz in enumerate(chunks):
            Ts = list(range(T0, T0 + sz))
            T0 += sz
            pend = []
            for T in Ts:
                if T == 41 * b:
                    maxq.append((2 * T + 3, 1, f"v_add_f32@ {v(tile(T))}, {v(tile(T))}, {v(vMASK)}", T))
                pend.append(T)
                first = c == 0 and pend[0] == Ts[0]
                if first and sz & 1:
                    if len(pend) == 3:
                        maxq.append((2 * T + 3, 1, f"v_max3_f32 {v(vM)}, {v(tile(pend[0]))}, {v(tile(pend[1]))}, {v(tile(pend[2]))}", pend[0]))
                        pend = []
                elif len(pend) == 2:
                    if first:
                        maxq.append((2 * T + 3, 1, f"v_max_f32@ {v(vM)}, {v(tile(pend[0]))}, {v(tile(pend[1]))}", pend[0]))
                    else:
                        maxq.append((2 * T + 3, 1, f"v_max3_f32 {v(vM)}, {v(tile(pend[0]))}, {v(tile(pend[1]))}, {v(vM)}", pend[0]))
                    pend = []
            if pend:
                maxq.append((2 * pend[0] + 3, 1, f"v_max_f32@ {v(vM)}, {v(tile(pend[0]))}, {v(vM)}", pend[0]))
            ready = 2 * Ts[-1] + 3
            nm, old = vNM[b][(nch - 1 - c) & 1], vNM[b][(nch - c) & 1]
            add = lambda cost, text, T=None, gate=0: sm.append((ready, cost, text, T, gate))
            add(1, f"v_mul_f32_e64 {v(nm)}, -{v(vM)}, s{sSC}", None, len(maxq))

            def head(T):
                add(1, f"v_fma_f32 {v(vT[T & 1])}, {v(tile(T))}, s{sSC}, {v(nm)}", T)
                add(2, f"v_exp_f32@ {v(vT[T & 1])}, {v(vT[T & 1])}")

            def tailops(T):
                t = vT[T & 1]
                if c == 0 and T == Ts[0]:
                    add(1, f"v_mul_f32@ {v(ACC)}, {v(t)}, {v(tile(T) + 1)}", T)
                    return
                add(1, f"v_fmac_f32@ {v(ACC)}, {v(t)}, {v(tile(T) + 1)}", T)
                if c == 0 and T == Ts[1]:
                    add(1, f"v_add_f32@ {v(L_)}, {v(vT[0])}, {v(vT[1])}")
                elif T == Ts[0]:
                    add(1, f"v_fma_f32 {v(L_)}, {v(L_)}, {v(old)}, {v(t)}")
                else:
                    add(1, f"v_add_f32@ {v(L_)}, {v(L_)}, {v(t)}")
            if c:
                add(1, f"v_sub_f32@ {v(old)}, {v(nm)}, {v(old)}")
                add(2, f"v_exp_f32@ {v(old)}, {v(old)}")
            head(Ts[0])
            if c:
                add(1, f"v_mul_f32@ {v(ACC)}, {v(ACC)}, {v(old)}")
                rest = Ts
            else:
                head(Ts[1])
                tailops(Ts[0])
                tailops(Ts[1])
                head(Ts[2])
                rest = Ts[2:]
            for i, T in enumerate(rest):
                if i + 1 < len(rest):
                    head(rest[i + 1])
                tailops(T)
    st = dict(credit=0.0, maxdone=0, odd=False)

    def emit(text):
        if "@" in text:
            A(text.replace("@", "_e32" if st["odd"] else "_e64"))
            st["odd"] = False
        else:
            if st["odd"]:
                A("s_nop 0")
                st["odd"] = False
            A(text)

    def small(text):
        A(text)
        st["odd"] = not st["odd"]

    def align():
        if st["odd"]:
            A("s_nop 0")
            st["odd"] = False

    def softmax_slots(n, budget, late_pos=False):
        used = cnt = 0
        while True:
            lim = next((s_[4] for s_ in sm if s_[4]), 10 ** 9)
            if maxq and maxq[0][0] <= n and st["maxdone"] < lim and used < budget:
                it = maxq.pop(0)
                st["maxdone"] += 1
            elif sm and sm[0][0] <= n and used < budget and (sm[0][4] == 0 or st["maxdone"] >= sm[0][4]):
                it = sm.pop(0)
            else:
                break
            if it[3] is not None:
                assert n + late_pos <= 2 * (it[3] + NB - 1), f"tile {it[3]} read too late in unit {n}"
            emit(it[2])
            used += it[1]
            cnt += 1
        return used, cnt

    def urgent(n0):
        return any(n0 + i > x["first"] - 3 for i, (x, q) in enumerate(rq[:8]))

    def hook(n, nxt_h2):
        if can_read() and urgent(nxt_h2):
            do_read()
            return 1
        return 0

    def lg_count(n):
        regs = {("v", SLOT[x["slot"]] + k) for x in pairs[n] for k in range(8) if x["slot"] is not None}
        last = max([i for i, q in enumerate(A.lg) if q[0] & regs], default=-1)
        return [f"lgkmcnt({len(A.lg) - 1 - last})"] if last >= 0 else []

    def lg_wait(n):
        w_ = lg_count(n)
        if w_:
            small("s_waitcnt " + w_[0])
        return len(w_)

    lg_wait(0)
    lg_wait(1)
    st["odd"] = False
    A(".p2align 3")
    for k in range(4):
        P(0, k)
    A("s_nop 0")
    A("s_nop 0")
    A.nopad = True
    main0 = len(A.ins)
    pend_c = None
    g_ready = None
    lastg = -10
    for n in range(NP + 1):
        live = n < NP
        cur[0] = n
        x, T, par = X[n & 1], n >> 1, n & 1
        if n >= NP - 1:
            A.nopad = False
        if live:
            A(f"{mh} {v(x, 16)}, {v(WP, 4)}, {v(PL[par], 4)}, {v(BIAS, 16)}")
            hook(n, n)
            for k in range(4, 8):
                P(n, k)
            for xx in pairs[n]:
                if xx["last"] == n:
                    free.append(xx["slot"])
        if n:
            F(n - 1, 2)
            F(n - 1, 3)
        else:
            A("s_nop 0")
            A("s_nop 0")
        extra = 0
        if live:
            A(f"{mh} {v(x, 16)}, {v(WP + 4, 4)}, {v(PH, 4)}, {v(x, 16)}")
            if n + 1 < NP:
                assert all(xx["issued"] == 2 for xx in pairs[n + 1]), f"vectors of pair {n + 1} not issued"
                if lg_wait(n + 1):
                    align()
                    extra += 2
                else:
                    extra += hook(n, n)
        if n:
            for k in range(4, 8):
                F(n - 1, k)
        if n + 1 < NP:
            P(n + 1, 0)
            P(n + 1, 1)
        if n:
            A(f"v_smfmac_f32_16x16x64_bf16 {v(tile((n - 1) >> 1), 4)}, {v(AABS + 4 * ((n - 1) & 1), 4)}, {v(X[(n - 1) & 1], 8)}, {v(vSIDX)}")
        conv_here = live and n in convU
        if can_read():
            do_read()
            extra += 1
        elif g_ready is not None:
            A(g_load(g_ready))
            g_ready = None
            extra += 1
        w_ = []
        if conv_here:
            t = convU.index(n)
            assert t < gnext[0] and t != g_ready, f"gather {t} not issued"
            last = max([i for i, q in enumerate(A.vm) if gkey(t) in q[0]], default=-1)
            if last >= 0:
                w_.append(f"vmcnt({len(A.vm) - 1 - last})")
        if n + 2 < NP and all(xx["issued"] == 2 and xx["at"] < n for xx in pairs[n + 2]):
            w_ += lg_count(n + 2)
        if w_:
            small("s_waitcnt " + " ".join(w_))
            extra += 1
        st["credit"] += cfg.rate
        cnt = 0
        if pend_c is not None:
            for o in c_ops(CV):
                emit(o)
            cnt += 4
        want_g = g_ready is None and gnext[0] < 26 and n - lastg >= cfg.gpace
        if want_g and not conv_here:
            emit(g_addr(gnext[0]))
            g_ready, lastg = gnext[0], n
            gnext[0] += 1
            cnt += 1
        soon = conv_here or (n + 1) in convU
        budget = (0 if cnt else 1) if soon else st["credit"]
        acc_ = sum(q_[1] for q_ in maxq if q_[0] <= n)
        for it in sm[:40]:
            if it[0] > n:
                break
            acc_ += it[1]
            if it[3] is not None:
                left = 2 * (it[3] + NB - 1) - n
                budget = max(budget, acc_ - 4 * left)
        used, c_ = softmax_slots(n, budget)
        st["credit"] -= used
        cnt += c_
        align()
        if live and extra + cnt < (6 if n == 0 else 1):
            A("s_nop 4" if n == 0 else "s_nop 0")
            A("s_nop 0")
        if live:
            A(f"{ml} {v(tile(T), 4)}, {v(ALIN + 8 * par, 4)}, {v(PL[par], 4)}, {v(tile(T), 4) if par else '0'}")
            if pend_c is not None:
                A(c_w(pend_c, CV))
                pend_c = None
            else:
                hook(n, n + 1)
        if n + 1 < NP:
            P(n + 1, 2)
            P(n + 1, 3)
        if live:
            A(f"{ml} {v(tile(T), 4)}, {v(ALIN + 8 * par + 4, 4)}, {v(PH, 4)}, {v(tile(T), 4)}")
            hook(n, n + 1)
            F(n, 0)
            F(n, 1)
        if conv_here:
            A(c_m(t, CV))
            hook(n, n + 1)
            pend_c = t
            k = 6
            if want_g:
                emit(g_addr(gnext[0]))
                g_ready, lastg = gnext[0], n
                gnext[0] += 1
                k -= 1
            used, c_ = softmax_slots(n, k, True)
            st["credit"] -= used
        st["credit"] = min(st["credit"], 6.0 if (n + 1) in convU else 2.0)
    softmax_slots(NP + 1, 10 ** 6)
    assert not sm and not maxq and not rq and gnext[0] == 26 and g_ready is None
    main1 = len(A.ins)
    stamp()
    n0, n1 = vNM[0][0], vNM[1][0]
    dpp8 = "row_ror:8 row_mask:0xf bank_mask:0xf"
    A(f"v_permlane32_swap_b32 {v(n0)}, {v(n1)}")
    A("s_lshl_b32 s3, s3, 5")
    A(f"v_min_f32 v13, {v(n0)}, {v(n1)}")
    A(f"v_permlane32_swap_b32 {v(vL[0])}, {v(vL[1])}")
    A("v_and_b32 v1, 7, v0")
    A(f"v_min_f32_dpp v13, v13, v13 {dpp8}")
    A("v_mov_b32 v14, v13")
    A(f"v_permlane32_swap_b32 {v(vACC[0])}, {v(vACC[1])}")
    A("v_bfe_u32 v2, v0, 5, 1")
    A("v_permlane16_swap_b32 v13, v14")
    A("v_min_f32 v13, v13, v14")
    A(f"v_sub_f32 {v(n0)}, v13, {v(n0)}")
    A(f"v_sub_f32 {v(n1)}, v13, {v(n1)}")
    A(f"v_exp_f32 {v(n0)}, {v(n0)}")
    A(f"v_exp_f32 {v(n1)}, {v(n1)}")
    A(f"v_mul_f32 v13, {v(n0)}, {v(vL[0])}")
    A(f"v_mul_f32 v14, {v(n0)}, {v(vACC[0])}")
    A(f"v_fmac_f32 v13, {v(n1)}, {v(vL[1])}")
    A(f"v_fmac_f32 v14, {v(n1)}, {v(vACC[1])}")
    A("v_lshl_add_u32 v1, v2, 3, v1")
    A("v_lshl_add_u32 v1, v1, 1, s3")
    A("v_permlane16_swap_b32 v13, v14")
    A("v_add_f32 v13, v13, v14")
    A("s_movk_i32 s44, 0x1f8")
    smask(40, lanemask(lambda l: (l & 24) == 0))
    A(f"v_add_f32_dpp v13, v13, v13 {dpp8}")
    A("v_mov_b32 v14, v13")
    A(f"s_cmp_le_i32 s{sK}, -64")
    A("s_cselect_b64 s[42:43], -1, 0")
    A("v_permlane16_swap_b32 v13, v14")
    A("v_rcp_f32 v13, v13")
    A(f"v_mul_f32 v14, s{sOSC}, v14")
    A("v_mul_f32 v13, v13, v14")
    A("v_cmp_class_f32_e64 vcc, v13, s44")
    A("v_cvt_pk_bf16_f32 v13, v13, v13")
    A(f"s_andn2_b64 s[40:41], s[40:41], s[{sDONE}:{sDONE + 1}]")
    A("s_or_b64 s[42:43], s[42:43], vcc")
    A("s_and_b64 exec, s[40:41], s[42:43]")
    A("s_cbranch_execz L_nostore")
    A("buffer_store_short v13, v1, s[24:27], 0 offen")
    A("L_nostore:")
    A(f"s_or_b64 s[{sDONE}:{sDONE + 1}], s[{sDONE}:{sDONE + 1}], exec")
    A("s_mov_b64 exec, -1")
    A(f"s_add_i32 s{sADJ}, s{sADJ}, 4")
    A("s_andn2_b64 s[40:41], s[40:41], s[42:43]")
    A("s_cbranch_scc1 L_retry")
    if cfg.stamps:
        A("s_waitcnt vmcnt(0)")
        stamp()
        A("s_mov_b64 exec, 1")
        A("s_lshl_b32 s3, s3, 2")
        A("v_mov_b32 v4, s3")
        for i in range(nst[0]):
            A(f"v_mov_b32 v2, s{56 + 4 * i}")
            A(f"v_mov_b32 v3, s{58 + 4 * i}")
            A(f"global_store_dwordx2 v4, v[2:3], s[18:19] offset:{8 * i}")
    A("L_end:")
    A("s_endpgm")
    cyc, stall = simulate(A.ins[main0:main1])
    kinds = {}
    for i in A.ins[main0:main1]:
        if i.real:
            kinds[i.kind] = kinds.get(i.kind, 0) + 1
    print(f"main: model {cyc} cycles ({cyc / NP:.1f}/unit), matrix stall {stall}, {kinds}; convU {convU}; slots {NS}; prologue model {simulate(A.ins[:main0])[0]}")
    return A


HEAD = """; @launch grid=(256,1,1) block=(256,1,1) lds={lds}
.amdgcn_target "amdgcn-amd-amdhsa--gfx950"
.text
.globl {n}_kernel
.p2align 8
.type {n}_kernel,@function
{n}_kernel:
"""
TAIL = """.section .rodata,"a"
.p2align 6
.amdhsa_kernel {n}_kernel
  .amdhsa_next_free_vgpr 360
  .amdhsa_next_free_sgpr 96
  .amdhsa_accum_offset 256
  .amdhsa_group_segment_fixed_size 0
  .amdhsa_kernarg_size 88
  .amdhsa_user_sgpr_count 2
  .amdhsa_user_sgpr_kernarg_segment_ptr 1
  .amdhsa_system_sgpr_workgroup_id_x 1
.end_amdhsa_kernel
"""

if __name__ == "__main__":
    out = sys.argv[1]
    for kv in sys.argv[2:]:
        k, val = kv.split("=", 1)
        assert hasattr(Cfg, k), k
        setattr(Cfg, k, eval(val))
    A = gen(Cfg)
    open(out, "w").write(HEAD.format(n=NAME, lds=LDS_BYTES) + A.text() + TAIL.format(n=NAME))
    print("instructions:", sum(i.real for i in A.ins), "pads:", A.pads, "max vgpr:", A.maxv(), "lds:", LDS_BYTES)
```

```python
import sys, struct, math
from asmlib import Asm, Ins, size_of, simulate

NAME = "standalone__factorization_afm__recsys"
FS = 640
CS = 160
BS = 26 * FS
WS = 2 * BS
LDS_BYTES = 4 * WS
UB = 82
NP = 2 * UB


def f32(x):
    return "0x%08x" % struct.unpack("<I", struct.pack("<f", x))[0]


def v(a, n=1):
    return f"v{a}" if n == 1 else f"v[{a}:{a + n - 1}]"


def a_(a, n=1):
    return f"a{a}" if n == 1 else f"a[{a}:{a + n - 1}]"


def lanemask(fn):
    m = 0
    for l in range(64):
        if fn(l):
            m |= 1 << l
    return m


class Cfg:
    chunks = [[7, 7, 7, 7, 7, 6], [7, 7, 7, 7, 7, 6]]
    NB = 11
    stamps = False
    gflags = ""
    D0 = 7
    nstart = 4
    lead = 4
    lead2 = 8
    gpace = 3
    rate = 3.1
    codepf = True
    diag = None
    comp = 1.0028
    target = 3


def gen(cfg=Cfg):
    A = Asm()
    NB = cfg.NB
    vAI, vA0, vAM, vW1, vW3, vCH, vGA, vSIDX, vMASK, vM = 1, 2, [None, 3, 4, 5], 6, 7, 8, [9, 10], 11, 12, 13
    vT = [14, 15]
    vNM, vL, vACC = [[16, 17], [20, 21]], [18, 22], [19, 23]
    IDX, PH, PL, X = 24, 32, [36, 40], [44, 60]
    BIAS, RR, WP, ALIN, AABS, SEL, CV, TILE = 76, 92, 100, 108, 124, 132, 136, 152
    S0 = TILE + 2 * NB + 2
    NS = (256 - S0) // 8
    SLOT = [S0 + 8 * i for i in range(NS)]
    assert NS >= 10
    WRAW, HRAW, BRAW, PRAW, SEL1, DH, DP, G0 = SLOT[0], SLOT[1], SLOT[2], SLOT[3], SLOT[4], SLOT[5], SLOT[7], SLOT[9]
    HS, HL = G0 + 4, G0 + 6
    DW, DU = X
    SH = CV
    sW, sADJ, sK, sWW, sQ, sSC, sOSC, sGC = 28, 29, 30, 31, 46, 47, 48, 49
    sDONE = 50
    sSELM = 32
    mf = "v_mfma_f32_32x32x16_bf16"
    mh = "v_mfma_f32_32x32x16_f16"
    ml = "v_mfma_f32_16x16x32_f16"

    def smask(reg, m):
        A(f"s_mov_b32 s{reg}, 0x{m & 0xffffffff:08x}")
        A(f"s_mov_b32 s{reg + 1}, 0x{m >> 32:08x}")
    nst = [0]

    def stamp():
        if cfg.stamps:
            i = nst[0]
            nst[0] += 1
            A.raw(f"s_memtime s[{56 + 4 * i}:{57 + 4 * i}]")
            A.raw(f"s_memrealtime s[{58 + 4 * i}:{59 + 4 * i}]")
            if A.lg or i >= 3:
                A("s_waitcnt lgkmcnt(0)")
                A("s_nop 0")

    A("s_cmp_ge_u32 s2, 256")
    A("s_cbranch_scc1 L_end")
    A("s_load_dwordx4 s[4:7], s[0:1], 0")
    A("s_load_dwordx8 s[8:15], s[0:1], 32")
    A("s_load_dwordx2 s[16:17], s[0:1], 64")
    if cfg.stamps:
        A("s_load_dwordx2 s[18:19], s[0:1], 80")
        A("s_load_dwordx2 s[52:53], s[0:1], 72")
        A.raw("s_memtime s[56:57]")
        A.raw("s_memrealtime s[58:59]")
        nst[0] = 1
    A("v_lshrrev_b32 v1, 6, v0")
    A(f"s_mov_b32 s{sADJ}, 0")
    A(f"v_readfirstlane_b32 s{sW}, v1")
    A(f"s_mov_b64 s[{sDONE}:{sDONE + 1}], 0")
    if cfg.codepf:
        A("s_getpc_b64 s[40:41]")
        A("L_pc:")
        A("s_bitcmp1_b32 s2, 3")
        A("s_cselect_b32 s3, 0x8000, 0")
        A("v_lshl_add_u32 v1, v0, 7, s3")
        A("v_min_u32 v1, L_end-L_pc, v1")
        A("global_load_dword a0, v1, s[40:41]")
    A("L_retry:")
    A("v_and_b32 v13, 63, v0")
    A("v_lshrrev_b32 v14, 5, v13")
    A(f"v_and_b32 {v(vCH)}, 3, v0")
    A(f"v_lshlrev_b32 {v(vCH)}, 4, {v(vCH)}")
    A("v_bfe_u32 v15, v0, 2, 3")
    A("v_lshl_add_u32 v16, v15, 1, v14")
    A("v_mul_u32_u24 v16, 52, v16")
    A(f"v_min_u32 v17, 36, {v(vCH)}")
    A("s_lshl_b32 s3, s2, 2")
    A(f"s_add_u32 s3, s3, s{sW}")
    A("s_mul_i32 s42, s3, 1664")
    A("v_add3_u32 v16, v16, v17, s42")
    A("v_and_b32 v17, 19, v0")
    A("v_and_b32 v18, 4, v0")
    A("v_lshl_or_b32 v17, v18, 1, v17")
    A("v_and_b32 v18, 8, v0")
    A("v_lshrrev_b32 v18, 1, v18")
    A("v_or_b32 v17, v17, v18")
    A("v_lshlrev_b32 v18, 4, v14")
    A("v_lshl_or_b32 v19, v17, 6, v18")
    A("v_lshlrev_b32 v17, 1, v17")
    A("v_and_b32 v20, 16, v0")
    A("v_lshl_or_b32 v20, v14, 3, v20")
    A(f"v_mov_b32 {v(HL)}, 0")
    pre = [
        f"s_mul_i32 s43, s{sW}, {WS}",
        f"v_mul_u32_u24 v21, 10, {v(vCH)}",
        "v_lshl_add_u32 v21, v15, 4, v21",
        f"v_mul_u32_u24 v22, {FS}, v14",
        f"v_add3_u32 {v(vW1)}, v21, v22, s43",
        f"v_lshl_add_u32 {v(vW3)}, v22, 1, {v(vW1)}",
        f"v_mul_u32_u24 v21, {CS}, v14",
        "v_and_b32 v22, 7, v0",
        "v_lshlrev_b32 v22, 4, v22",
        f"v_add3_u32 {v(vAI)}, v21, v22, s43",
        "v_bfe_u32 v21, v0, 3, 2",
        f"s_movk_i32 s44, {FS}",
        f"v_mad_u32_u24 {v(vA0)}, v21, s44, {v(vAI)}",
    ]
    for c in (1, 2, 3):
        pre += [f"v_subrev_u32 v22, {c}, v21", "v_and_b32 v22, 7, v22", f"v_mad_u32_u24 {v(vAM[c])}, v22, s44, {v(vAI)}"]
    for t in pre:
        A(t)
    A("s_waitcnt lgkmcnt(0)")
    A(f"global_load_dwordx4 {v(IDX, 4)}, v16, s[4:5]")
    A(f"global_load_dwordx4 {v(WRAW, 4)}, v19, s[8:9]")
    A(f"global_load_dwordx4 {v(WRAW + 4, 4)}, v19, s[8:9] offset:32")
    A(f"global_load_dwordx4 {v(HRAW, 4)}, v18, s[12:13]")
    A(f"global_load_dwordx4 {v(HRAW + 4, 4)}, v18, s[12:13] offset:32")
    A(f"global_load_dwordx4 {v(PRAW, 4)}, v18, s[14:15]")
    A(f"global_load_dwordx4 {v(PRAW + 4, 4)}, v18, s[14:15] offset:32")
    A(f"global_load_dwordx4 {v(BRAW, 4)}, v18, s[10:11]")
    A(f"global_load_dwordx4 {v(BRAW + 4, 4)}, v18, s[10:11] offset:32")
    A(f"global_load_short_d16_hi {v(HL)}, v17, s[12:13]")
    A(f"global_load_dwordx2 {v(HS, 2)}, v20, s[12:13] offset:32")
    A(f"global_load_dwordx4 {v(IDX + 4, 4)}, v16, s[4:5] offset:832")
    stamp()
    A("s_mov_b32 s20, s6")
    A("s_mov_b32 s21, s7")
    A("s_mov_b32 s22, 6400000")
    A("s_mov_b32 s23, 0x00020000")
    A("s_mov_b32 s24, s16")
    A("s_mov_b32 s25, s17")
    A("s_mov_b32 s26, 32768")
    A("s_mov_b32 s27, 0x00020000")
    A(f"v_and_b32 {v(SH)}, 1, v0")
    A(f"v_lshlrev_b32 {v(SH)}, 4, {v(SH)}")
    A("s_movk_i32 s44, 0x3f80")
    A(f"v_lshlrev_b32_e64 v21, {v(SH)}, s44")
    for R in (4, 5, 6, 7, 0, 1, 2, 3):
        m = lanemask(lambda l: (l >> 5) == ((l >> 2) & 1) and ((l >> 1) & 1) + 2 * ((l >> 3) & 3) == R)
        sm_ = sSELM + 2 * (R & 3)
        smask(sm_, m)
        A(f"v_cndmask_b32_e64 {v(SEL1 + R)}, 0, v21, s[{sm_}:{sm_ + 1}]")
    A(f"v_mov_b32 {v(vSIDX)}, 0xdddd")
    A("v_mov_b32 v21, 0xff800000")
    smask(40, lanemask(lambda l: 8 <= l < 32))
    A(f"v_cndmask_b32_e64 {v(vMASK)}, 0, v21, s[40:41]")

    def g_addr(t):
        b, tt = divmod(t, 13)
        ql, k = (tt // 4, tt % 4) if tt < 12 else (3, 3)
        return f"v_add_u32_dpp {v(vGA[t & 1])}, {v(IDX + 4 * b + k)}, {v(vCH)} quad_perm:[{ql},{ql},{ql},{ql}] row_mask:0xf bank_mask:0xf"
    greg = lambda t: v(G0, 4) if t == 0 else a_(4 * t, 4)
    gkey = lambda t: ("v", G0) if t == 0 else ("a", 4 * t)

    def g_load(t):
        return f"buffer_load_dwordx4 {greg(t)}, {v(vGA[t & 1])}, s[20:23], 0 offen {cfg.gflags}".strip()
    A.wait_vm_for([("v", IDX)])
    stamp()
    for k in range(4):
        A(f"v_lshlrev_b32 {v(IDX + k)}, 6, {v(IDX + k)}")
    for t in range(cfg.D0):
        A(g_addr(t))
        A(g_load(t))
    gnext = [cfg.D0]
    A.wait_vm_for([("v", IDX + 4)])
    stamp()
    A(f"{mf} {v(DW, 16)}, {v(WRAW, 4)}, {v(SEL1, 4)}, 0")
    A(f"{mf} {v(DW, 16)}, {v(WRAW + 4, 4)}, {v(SEL1 + 4, 4)}, {v(DW, 16)}")
    for k in range(4):
        A(f"v_lshlrev_b32 {v(IDX + 4 + k)}, 6, {v(IDX + 4 + k)}")
    A(f"{mf} {v(DP, 16)}, {v(SEL1, 4)}, {v(PRAW, 4)}, 0")
    A("s_mov_b32 s44, 0x80008000")
    A("v_mov_b32 v21, 0x3f803f80")
    for k in range(2):
        A(f"v_and_or_b32 {v(HS + k)}, {v(HS + k)}, s44, v21")
    A(f"{mf} {v(DP, 16)}, {v(SEL1 + 4, 4)}, {v(PRAW + 4, 4)}, {v(DP, 16)}")
    rest_m = [
        f"{mf} {v(DH, 16)}, {v(SEL1, 4)}, {v(HRAW, 4)}, 0",
        f"{mf} {v(DH, 16)}, {v(SEL1 + 4, 4)}, {v(HRAW + 4, 4)}, {v(DH, 16)}",
        f"{mf} {v(BIAS, 16)}, {v(SEL1, 4)}, {v(BRAW, 4)}, 0",
        f"{mf} {v(BIAS, 16)}, {v(SEL1 + 4, 4)}, {v(BRAW + 4, 4)}, {v(BIAS, 16)}",
        f"{mf} {v(DU, 16)}, {v(WRAW, 4)}, {v(HRAW, 4)}, 0",
        f"{mf} {v(DU, 16)}, {v(WRAW + 4, 4)}, {v(HRAW + 4, 4)}, {v(DU, 16)}",
    ]
    for par in range(2):
        for sg in range(2):
            smask(40 + 2 * sg, lanemask(lambda l: (l & 15) == 8 * par + 4 * sg))
            for k in range(2):
                A(f"v_cndmask_b32_e64 {v(AABS + 4 * par + 2 * sg + k)}, 0, {v(HS + k)}, s[{40 + 2 * sg}:{41 + 2 * sg}]")
        A(rest_m.pop(0))
    A(f"v_max_f32_e64 v13, |{v(DW)}|, |{v(DW + 1)}|")
    for k in range(1, 8):
        A(f"v_max3_f32 v13, |{v(DW + 2 * k)}|, |{v(DW + 2 * k + 1)}|, v13")
        if k == 5:
            A(rest_m.pop(0))
    A(f"v_mul_f32_e64 v13, v13, |{v(HL)}|")
    fill = [f"v_max_f32_e64 v14, |{v(DP)}|, |{v(DP + 1)}|"]
    fill += [f"v_max3_f32 v14, |{v(DP + 2 * k)}|, |{v(DP + 2 * k + 1)}|, v14" for k in range(1, 8)]
    fill += ["v_mov_b32 v15, v14"]
    fill += [f"v_xor_b32 {v(RR + k)}, {v(DH + k)}, {v(DH + 8 + k)}" for k in range(8)]

    def filler(n=2):
        for _ in range(n):
            if fill:
                A(fill.pop(0))
    for i, ctl in enumerate(("quad_perm:[1,0,3,2]", "quad_perm:[2,3,0,1]", "row_half_mirror", "row_mirror")):
        filler()
        A(f"v_max_f32_dpp v13, v13, v13 {ctl} row_mask:0xf bank_mask:0xf")
        if i & 1 == 0:
            A(rest_m.pop(0))
    A("v_mov_b32 v16, v13")
    filler()
    A("v_permlane16_swap_b32 v13, v16")
    A(rest_m.pop(0))
    A("v_max_f32 v13, v13, v16")
    A("v_permlane32_swap_b32 v14, v15")
    A("v_mov_b32 v16, v13")
    A("v_max_f32 v14, v14, v15")
    filler(1)
    A("v_permlane32_swap_b32 v13, v16")
    A(f"v_readfirstlane_b32 s{sQ}, v14")
    A("v_max_f32 v13, v13, v16")
    filler(1)
    A(f"v_readfirstlane_b32 s{sWW}, v13")
    filler(16)
    assert not rest_m
    A(f"s_lshr_b32 s{sQ}, s{sQ}, 23")
    A(f"s_sub_i32 s{sQ}, 141, s{sQ}")
    A(f"s_min_i32 s{sQ}, s{sQ}, 40")
    A(f"s_lshl_b32 s44, s{sQ}, 23")
    A("s_add_u32 s44, s44, 0x3f800000")
    A(f"s_lshr_b32 s{sWW}, s{sWW}, 23")
    A(f"s_sub_i32 s{sWW}, 136, s{sWW}")
    A(f"s_min_i32 s{sWW}, s{sWW}, 40")
    A(f"s_lshl_b32 s45, s{sWW}, 23")
    A(f"s_add_u32 s{sGC}, s45, {f32(0.5 * math.log2(math.e) * cfg.comp)}")
    A(f"s_add_u32 s45, s45, {f32(0.5 * math.log2(math.e))}")
    A(f"v_mul_f32_e64 v13, s{sGC}, |{v(HL)}|")
    smask(40, lanemask(lambda l: l & 1))
    A("v_mov_b32 v14, s45")
    A("v_mov_b32 v15, s44")
    A("v_cndmask_b32_e64 v14, v14, v15, s[40:41]")
    for k in range(16):
        A(f"v_mul_f32 {v(DW + k)}, v13, {v(DW + k)}")
        A(f"v_cndmask_b32_e64 {v(DU + k)}, {v(DU + k)}, {v(DP + k)}, s[40:41]")
    smask(40, lanemask(lambda l: ((l >> 3) & 1) == 0 and not (l & 2) and ((l >> 2) & 1) == ((l >> 4) & 1)))
    smask(42, lanemask(lambda l: ((l >> 3) & 1) == 1 and not (l & 2) and ((l >> 2) & 1) == ((l >> 4) & 1)))
    A("s_brev_b32 s44, 1")
    for k in range(16):
        A(f"v_mul_f32 {v(DU + k)}, v14, {v(DU + k)}")
        A(f"v_mul_f32_e64 {v(BIAS + k)}, {v(BIAS + k)}, |{v(DH + k)}|")
    for k in range(8):
        A(f"v_cvt_pk_f16_f32 {v(DU + k)}, {v(DU + 2 * k)}, {v(DU + 2 * k + 1)}")
        A(f"v_cvt_pk_f16_f32 {v(WP + k)}, {v(DW + 2 * k)}, {v(DW + 2 * k + 1)}")
        A(f"v_cndmask_b32_e64 {v(ALIN + k)}, 0, {v(DU + k)}, s[40:41]")
        A(f"v_cndmask_b32_e64 {v(ALIN + 8 + k)}, 0, {v(DU + k)}, s[42:43]")
        A(f"v_and_or_b32 {v(RR + k)}, {v(RR + k)}, s44, 1.0")
    stamp()
    if cfg.diag and cfg.diag[0] < 0:
        A("s_and_b32 s44, s3, 0x3e3")
        A("s_cmp_lg_u32 s44, 0")
        A("s_cbranch_scc1 L_nopub")
        A("s_not_b32 s44, s58")
        A("v_mov_b32 v13, s44")
        A("v_mov_b32 v14, 0")
        A("s_mov_b64 exec, 1")
        A.raw("global_atomic_umax v14, v13, s[52:53] sc1")
        A.raw("s_waitcnt vmcnt(0)")
        A("s_mov_b64 exec, -1")
        A("L_nopub:")
    A.wait_vm_for([gkey(0)])
    stamp()
    neg = "neg_lo:[0,1,0] neg_hi:[0,1,0]"
    A(f"v_pk_maximum3_f16 v13, {v(G0)}, {v(G0)}, 0 {neg}")
    A(f"v_pk_maximum3_f16 v14, {v(G0 + 1)}, {v(G0 + 1)}, 0 {neg}")
    A(f"v_pk_maximum3_f16 v13, {v(G0 + 2)}, {v(G0 + 2)}, v13 {neg}")
    A(f"v_pk_maximum3_f16 v14, {v(G0 + 3)}, {v(G0 + 3)}, v14 {neg}")
    A("v_pk_max_u16 v13, v13, v14")
    A("v_max_u32_sdwa v13, v13, v13 dst_sel:DWORD dst_unused:UNUSED_PAD src0_sel:WORD_0 src1_sel:WORD_1")
    A(g_addr(gnext[0]))
    A(g_load(gnext[0]))
    gnext[0] += 1
    A("v_max_u32_dpp v13, v13, v13 quad_perm:[1,0,3,2] row_mask:0xf bank_mask:0xf")
    A("v_max_u32_dpp v13, v13, v13 quad_perm:[2,3,0,1] row_mask:0xf bank_mask:0xf")
    A("v_mov_b32 v14, v13")
    A("v_permlane32_swap_b32 v13, v14")
    A("v_max_u32 v13, v13, v14")
    A("v_add_u32 v13, -1, v13")
    A("v_min_u32_dpp v13, v13, v13 row_ror:4 row_mask:0xf bank_mask:0xf")
    A("v_min_u32_dpp v13, v13, v13 row_ror:8 row_mask:0xf bank_mask:0xf")
    A("v_readlane_b32 s44, v13, 0")
    A("v_readlane_b32 s45, v13, 16")
    A("s_min_u32 s44, s44, s45")
    A("s_add_u32 s44, s44, 1")
    A("s_bfe_u32 s44, s44, 0x80007")
    A(f"s_sub_i32 s{sK}, {127 + cfg.target}, s44")
    A(f"s_min_i32 s{sK}, s{sK}, 40")
    A(f"s_sub_i32 s{sK}, s{sK}, s{sADJ}")
    A(f"s_max_i32 s{sK}, s{sK}, -64")
    A(f"s_add_i32 s44, s{sK}, 127")
    A("s_lshl_b32 s44, s44, 7")
    A(f"v_lshlrev_b32_e64 v13, {v(SH)}, s44")
    for R in range(4):
        A(f"v_cndmask_b32_e64 {v(SEL + R)}, 0, v13, s[{sSELM + 2 * R}:{sSELM + 2 * R + 1}]")

    gpos = []
    vecs = []
    pairs = []
    CC = [0, 1, -1, 2, -2, 3, -3, 4]
    for b in range(2):
        g0, base = 13 * b, b * BS
        gpos.append((vW1, base))
        def vec(reg, pos, g):
            vecs.append(dict(reg=reg, off=base + pos * FS, g=g, slot=None, issued=0))
            return vecs[-1]
        I = [vec(vAI, 0, g0), vec(vAI, 1, g0)]
        pairs.append((I[0], I[1]))
        reps = []
        for bb in range(3):
            p0, gb = 2 + 8 * bb, g0 + 1 + 4 * bb
            gpos.extend([(vW1, base + p0 * FS), (vW1, base + (p0 + 2) * FS), (vW3, base + (p0 + 4) * FS), (vW1, base + (p0 + 5) * FS)])
            prev, mine = None, []
            for k, c in enumerate(CC):
                g = gb + (1 if k == 0 else 2 if k < 3 else 3)
                x = vec(vA0, p0 + c, g) if c >= 0 else vec(vAM[-c], p0, g)
                if prev is not None:
                    pairs.append((prev, x))
                for r in reps:
                    pairs.append((x, r))
                if k in (0, 7):
                    pairs.extend([(x, I[0]), (x, I[1])])
                    mine.append(x)
                prev = x
            reps += mine
    assert len(pairs) == NP and len(gpos) == 26
    for n, pr in enumerate(pairs):
        for x in pr:
            x.setdefault("first", n)
            x["last"] = n
    need = [min(x["first"] for x in vecs if x["g"] >= t) for t in range(26)]
    convU = [None] * 26
    nxt = 10 ** 9
    for t in range(25, -1, -1):
        lead = cfg.lead if t < 9 else cfg.lead2
        convU[t] = min(need[t] - lead, nxt - (1 if t < 9 else 2))
        if t < cfg.nstart:
            convU[t] = -1
        assert t < cfg.nstart or convU[t] >= 0, (t, convU[t])
        nxt = convU[t]
    cur = [-1]
    written = [-1]
    free = list(range(NS))
    rq = [(x, q) for x in vecs for q in range(2)]

    def c_ops(d):
        return [f"v_cvt_pk_f16_f32 {v(d + k)}, {v(d + 2 * k)}, {v(d + 2 * k + 1)}" for k in range(4)]

    def c_m(t, d):
        return f"{mf} {v(d, 16)}, {v(SEL, 4)}, {greg(t)}, 0"

    def c_w(t, d):
        written[0] = t
        return f"ds_write_b128 {v(gpos[t][0])}, {v(d, 4)} offset:{gpos[t][1]}"

    def can_read():
        if not rq:
            return False
        x, q = rq[0]
        return x["g"] <= written[0] and (x["slot"] is not None or bool(free))

    def do_read():
        x, q = rq.pop(0)
        if x["slot"] is None:
            x["slot"] = free.pop(0)
        x["issued"] += 1
        x["at"] = cur[0]
        A(f"ds_read_b128 {v(SLOT[x['slot']] + 4 * q, 4)}, {v(x['reg'])} offset:{x['off'] + q * 2 * CS}")

    late = [f"v_mul_f32 {v(BIAS + k)}, v14, {v(BIAS + k)}" for k in range(16)]
    win = [CV, X[0], X[1]]
    A(c_m(0, win[0]))
    A(f"s_lshl_b32 s44, s{sK}, 1")
    A(f"v_mov_b32 v14, s{sGC}")
    A(f"s_add_i32 s45, s44, s{sWW}")
    A("v_ldexp_f32 v14, v14, s44")
    A("s_sub_i32 s45, 127, s45")
    A("s_min_i32 s45, s45, 255")
    A(f"s_lshl_b32 s{sSC}, s45, 23")
    A(f"s_add_i32 s45, s44, s{sQ}")
    A("s_sub_i32 s45, 127, s45")
    A("s_min_i32 s45, s45, 255")
    A(f"s_lshl_b32 s{sOSC}, s45, 23")
    for t in range(1, cfg.nstart + 1):
        if t < cfg.nstart:
            A.wait_vm_for([gkey(t)])
            A(c_m(t, win[t % 3]))
            A(g_addr(gnext[0]))
            A(g_load(gnext[0]))
            gnext[0] += 1
        k = len(late) if t == cfg.nstart else 4
        if t > 1:
            for o in late[:k]:
                A(o)
            late = late[k:]
        for o in c_ops(win[(t - 1) % 3]):
            A(o)
        A(c_w(t - 1, win[(t - 1) % 3]))
        while can_read():
            do_read()
    stamp()

    def P(n, k):
        xa, xb = pairs[n]
        d = PL[n & 1] + k if k < 4 else PH + k - 4
        A(f"v_pk_mul_f16 {v(d)}, {v(SLOT[xa['slot']] + k)}, {v(SLOT[xb['slot']] + k)}")

    def F(n, k):
        x = X[n & 1]
        A(f"v_fma_f32 {v(x + k)}, |{v(x + k)}|, {v(RR + k)}, |{v(x + 8 + k)}|")
    tile = lambda T: TILE + 2 * (T % NB)

    sm, maxq = [], []
    for b in range(2):
        T0 = 41 * b
        chunks = cfg.chunks[b]
        assert sum(chunks) == 41
        nch = len(chunks)
        L_, ACC = vL[b], vACC[b]
        for c, sz in enumerate(chunks):
            Ts = list(range(T0, T0 + sz))
            T0 += sz
            pend = []
            for T in Ts:
                if T == 41 * b:
                    maxq.append((2 * T + 3, 1, f"v_add_f32@ {v(tile(T))}, {v(tile(T))}, {v(vMASK)}", T))
                pend.append(T)
                first = c == 0 and pend[0] == Ts[0]
                if first and sz & 1:
                    if len(pend) == 3:
                        maxq.append((2 * T + 3, 1, f"v_max3_f32 {v(vM)}, {v(tile(pend[0]))}, {v(tile(pend[1]))}, {v(tile(pend[2]))}", pend[0]))
                        pend = []
                elif len(pend) == 2:
                    if first:
                        maxq.append((2 * T + 3, 1, f"v_max_f32@ {v(vM)}, {v(tile(pend[0]))}, {v(tile(pend[1]))}", pend[0]))
                    else:
                        maxq.append((2 * T + 3, 1, f"v_max3_f32 {v(vM)}, {v(tile(pend[0]))}, {v(tile(pend[1]))}, {v(vM)}", pend[0]))
                    pend = []
            if pend:
                maxq.append((2 * pend[0] + 3, 1, f"v_max_f32@ {v(vM)}, {v(tile(pend[0]))}, {v(vM)}", pend[0]))
            ready = 2 * Ts[-1] + 3
            nm, old = vNM[b][(nch - 1 - c) & 1], vNM[b][(nch - c) & 1]
            add = lambda cost, text, T=None, gate=0: sm.append((ready, cost, text, T, gate))
            add(1, f"v_mul_f32_e64 {v(nm)}, -{v(vM)}, s{sSC}", None, len(maxq))

            def head(T):
                add(1, f"v_fma_f32 {v(vT[T & 1])}, {v(tile(T))}, s{sSC}, {v(nm)}", T)
                add(2, f"v_exp_f32@ {v(vT[T & 1])}, {v(vT[T & 1])}")

            def tailops(T):
                t = vT[T & 1]
                if c == 0 and T == Ts[0]:
                    add(1, f"v_mul_f32@ {v(ACC)}, {v(t)}, {v(tile(T) + 1)}", T)
                    return
                add(1, f"v_fmac_f32@ {v(ACC)}, {v(t)}, {v(tile(T) + 1)}", T)
                if c == 0 and T == Ts[1]:
                    add(1, f"v_add_f32@ {v(L_)}, {v(vT[0])}, {v(vT[1])}")
                elif T == Ts[0]:
                    add(1, f"v_fma_f32 {v(L_)}, {v(L_)}, {v(old)}, {v(t)}")
                else:
                    add(1, f"v_add_f32@ {v(L_)}, {v(L_)}, {v(t)}")
            if c:
                add(1, f"v_sub_f32@ {v(old)}, {v(nm)}, {v(old)}")
                add(2, f"v_exp_f32@ {v(old)}, {v(old)}")
            head(Ts[0])
            if c:
                add(1, f"v_mul_f32@ {v(ACC)}, {v(ACC)}, {v(old)}")
                rest = Ts
            else:
                head(Ts[1])
                tailops(Ts[0])
                tailops(Ts[1])
                head(Ts[2])
                rest = Ts[2:]
            for i, T in enumerate(rest):
                if i + 1 < len(rest):
                    head(rest[i + 1])
                tailops(T)
    st = dict(credit=0.0, maxdone=0, odd=False)

    def emit(text):
        if "@" in text:
            A(text.replace("@", "_e32" if st["odd"] else "_e64"))
            st["odd"] = False
        else:
            if st["odd"]:
                A("s_nop 0")
                st["odd"] = False
            A(text)

    def small(text):
        A(text)
        st["odd"] = not st["odd"]

    def align():
        if st["odd"]:
            A("s_nop 0")
            st["odd"] = False

    def softmax_slots(n, budget, late_pos=False):
        used = cnt = 0
        while True:
            lim = next((s_[4] for s_ in sm if s_[4]), 10 ** 9)
            if maxq and maxq[0][0] <= n and st["maxdone"] < lim and used < budget:
                it = maxq.pop(0)
                st["maxdone"] += 1
            elif sm and sm[0][0] <= n and used < budget and (sm[0][4] == 0 or st["maxdone"] >= sm[0][4]):
                it = sm.pop(0)
            else:
                break
            if it[3] is not None:
                assert n + late_pos <= 2 * (it[3] + NB - 1), f"tile {it[3]} read too late in unit {n}"
            emit(it[2])
            used += it[1]
            cnt += 1
        return used, cnt

    def urgent(n0):
        return any(n0 + i > x["first"] - 3 for i, (x, q) in enumerate(rq[:8]))

    def hook(n, nxt_h2):
        if can_read() and urgent(nxt_h2):
            do_read()
            return 1
        return 0

    def lg_count(n):
        regs = {("v", SLOT[x["slot"]] + k) for x in pairs[n] for k in range(8) if x["slot"] is not None}
        last = max([i for i, q in enumerate(A.lg) if q[0] & regs], default=-1)
        return [f"lgkmcnt({len(A.lg) - 1 - last})"] if last >= 0 else []

    def lg_wait(n):
        w_ = lg_count(n)
        if w_:
            small("s_waitcnt " + w_[0])
        return len(w_)

    lg_wait(0)
    lg_wait(1)
    st["odd"] = False
    A(".p2align 3")
    for k in range(4):
        P(0, k)
    A("s_nop 0")
    A("s_nop 0")
    A.nopad = True
    main0 = len(A.ins)
    pend_c = None
    g_ready = None
    lastg = -10
    for n in range(NP + 1):
        live = n < NP
        cur[0] = n
        x, T, par = X[n & 1], n >> 1, n & 1
        if n >= NP - 1:
            A.nopad = False
        if live:
            A(f"{mh} {v(x, 16)}, {v(WP, 4)}, {v(PL[par], 4)}, {v(BIAS, 16)}")
            hook(n, n)
            for k in range(4, 8):
                P(n, k)
            for xx in pairs[n]:
                if xx["last"] == n:
                    free.append(xx["slot"])
        if n:
            F(n - 1, 2)
            F(n - 1, 3)
        else:
            A("s_nop 0")
            A("s_nop 0")
        extra = 0
        if live:
            A(f"{mh} {v(x, 16)}, {v(WP + 4, 4)}, {v(PH, 4)}, {v(x, 16)}")
            if n + 1 < NP:
                assert all(xx["issued"] == 2 for xx in pairs[n + 1]), f"vectors of pair {n + 1} not issued"
                if lg_wait(n + 1):
                    align()
                    extra += 2
                else:
                    extra += hook(n, n)
        if n:
            for k in range(4, 8):
                F(n - 1, k)
        if n + 1 < NP:
            P(n + 1, 0)
            P(n + 1, 1)
        if n:
            A(f"v_smfmac_f32_16x16x64_bf16 {v(tile((n - 1) >> 1), 4)}, {v(AABS + 4 * ((n - 1) & 1), 4)}, {v(X[(n - 1) & 1], 8)}, {v(vSIDX)}")
        conv_here = live and n in convU
        if can_read():
            do_read()
            extra += 1
        elif g_ready is not None:
            A(g_load(g_ready))
            g_ready = None
            extra += 1
        w_ = []
        if conv_here:
            t = convU.index(n)
            assert t < gnext[0] and t != g_ready, f"gather {t} not issued"
            last = max([i for i, q in enumerate(A.vm) if gkey(t) in q[0]], default=-1)
            if last >= 0:
                w_.append(f"vmcnt({len(A.vm) - 1 - last})")
        if n + 2 < NP and all(xx["issued"] == 2 and xx["at"] < n for xx in pairs[n + 2]):
            w_ += lg_count(n + 2)
        if w_:
            small("s_waitcnt " + " ".join(w_))
            extra += 1
        st["credit"] += cfg.rate
        cnt = 0
        if pend_c is not None:
            for o in c_ops(CV):
                emit(o)
            cnt += 4
        want_g = g_ready is None and gnext[0] < 26 and n - lastg >= cfg.gpace
        if want_g and not conv_here:
            emit(g_addr(gnext[0]))
            g_ready, lastg = gnext[0], n
            gnext[0] += 1
            cnt += 1
        soon = conv_here or (n + 1) in convU
        budget = (0 if cnt else 1) if soon else st["credit"]
        acc_ = sum(q_[1] for q_ in maxq if q_[0] <= n)
        for it in sm[:40]:
            if it[0] > n:
                break
            acc_ += it[1]
            if it[3] is not None:
                left = 2 * (it[3] + NB - 1) - n
                budget = max(budget, acc_ - 4 * left)
        used, c_ = softmax_slots(n, budget)
        st["credit"] -= used
        cnt += c_
        align()
        if live and extra + cnt < (6 if n == 0 else 1):
            A("s_nop 4" if n == 0 else "s_nop 0")
            A("s_nop 0")
        if live:
            A(f"{ml} {v(tile(T), 4)}, {v(ALIN + 8 * par, 4)}, {v(PL[par], 4)}, {v(tile(T), 4) if par else '0'}")
            if pend_c is not None:
                A(c_w(pend_c, CV))
                pend_c = None
            else:
                hook(n, n + 1)
        if n + 1 < NP:
            P(n + 1, 2)
            P(n + 1, 3)
        if live:
            A(f"{ml} {v(tile(T), 4)}, {v(ALIN + 8 * par + 4, 4)}, {v(PH, 4)}, {v(tile(T), 4)}")
            hook(n, n + 1)
            F(n, 0)
            F(n, 1)
        if conv_here:
            A(c_m(t, CV))
            hook(n, n + 1)
            pend_c = t
            k = 6
            if want_g:
                emit(g_addr(gnext[0]))
                g_ready, lastg = gnext[0], n
                gnext[0] += 1
                k -= 1
            used, c_ = softmax_slots(n, k, True)
            st["credit"] -= used
        st["credit"] = min(st["credit"], 6.0 if (n + 1) in convU else 2.0)
    softmax_slots(NP + 1, 10 ** 6)
    assert not sm and not maxq and not rq and gnext[0] == 26 and g_ready is None
    main1 = len(A.ins)
    stamp()
    n0, n1 = vNM[0][0], vNM[1][0]
    dpp8 = "row_ror:8 row_mask:0xf bank_mask:0xf"
    A(f"v_permlane32_swap_b32 {v(n0)}, {v(n1)}")
    A("s_lshl_b32 s3, s3, 5")
    A(f"v_min_f32 v13, {v(n0)}, {v(n1)}")
    A(f"v_permlane32_swap_b32 {v(vL[0])}, {v(vL[1])}")
    A("v_and_b32 v1, 7, v0")
    A(f"v_min_f32_dpp v13, v13, v13 {dpp8}")
    A("v_mov_b32 v14, v13")
    A(f"v_permlane32_swap_b32 {v(vACC[0])}, {v(vACC[1])}")
    A("v_bfe_u32 v2, v0, 5, 1")
    A("v_permlane16_swap_b32 v13, v14")
    A("v_min_f32 v13, v13, v14")
    A(f"v_sub_f32 {v(n0)}, v13, {v(n0)}")
    A(f"v_sub_f32 {v(n1)}, v13, {v(n1)}")
    A(f"v_exp_f32 {v(n0)}, {v(n0)}")
    A(f"v_exp_f32 {v(n1)}, {v(n1)}")
    A(f"v_mul_f32 v13, {v(n0)}, {v(vL[0])}")
    A(f"v_mul_f32 v14, {v(n0)}, {v(vACC[0])}")
    A(f"v_fmac_f32 v13, {v(n1)}, {v(vL[1])}")
    A(f"v_fmac_f32 v14, {v(n1)}, {v(vACC[1])}")
    A("v_lshl_add_u32 v1, v2, 3, v1")
    A("v_lshl_add_u32 v1, v1, 1, s3")
    A("v_permlane16_swap_b32 v13, v14")
    A("v_add_f32 v13, v13, v14")
    A("s_movk_i32 s44, 0x1f8")
    smask(40, lanemask(lambda l: (l & 24) == 0))
    A(f"v_add_f32_dpp v13, v13, v13 {dpp8}")
    A("v_mov_b32 v14, v13")
    A(f"s_cmp_le_i32 s{sK}, -64")
    A("s_cselect_b64 s[42:43], -1, 0")
    A("v_permlane16_swap_b32 v13, v14")
    A("v_rcp_f32 v13, v13")
    A(f"v_mul_f32 v14, s{sOSC}, v14")
    A("v_mul_f32 v13, v13, v14")
    A("v_cmp_class_f32_e64 vcc, v13, s44")
    A("v_cvt_pk_bf16_f32 v13, v13, v13")
    A(f"s_andn2_b64 s[40:41], s[40:41], s[{sDONE}:{sDONE + 1}]")
    A("s_or_b64 s[42:43], s[42:43], vcc")
    A("s_and_b64 exec, s[40:41], s[42:43]")
    A("s_cbranch_execz L_nostore")
    A("buffer_store_short v13, v1, s[24:27], 0 offen")
    A("L_nostore:")
    A(f"s_or_b64 s[{sDONE}:{sDONE + 1}], s[{sDONE}:{sDONE + 1}], exec")
    A("s_mov_b64 exec, -1")
    A(f"s_add_i32 s{sADJ}, s{sADJ}, 4")
    A("s_andn2_b64 s[40:41], s[40:41], s[42:43]")
    A("s_cbranch_scc1 L_retry")
    if cfg.stamps:
        A("s_waitcnt vmcnt(0)")
        stamp()
        if cfg.diag:
            i_, j_ = cfg.diag
            last_ = 58 + 4 * (nst[0] - 1)
            if i_ < 0:
                A("v_mov_b32 v4, 0")
                A("global_load_dword v3, v4, s[52:53] sc0 sc1")
                A("s_waitcnt vmcnt(0)")
                A("v_readfirstlane_b32 s44, v3")
                A("s_not_b32 s44, s44")
                A(f"s_sub_u32 s44, s{58 + 4 * j_}, s44")
            else:
                A(f"s_sub_u32 s44, s{58 + 4 * j_}, s{58 + 4 * i_}")
            A("s_lshl_b32 s44, s44, 3")
            A("s_min_u32 s44, s44, 30000")
            A("s_mov_b32 s45, 200000")
            A("L_spin:")
            A("s_memrealtime s[42:43]")
            A("s_waitcnt lgkmcnt(0)")
            A(f"s_sub_u32 s42, s42, s{last_}")
            A("s_cmp_ge_u32 s42, s44")
            A("s_cbranch_scc1 L_end")
            A("s_sub_u32 s45, s45, 1")
            A("s_cmp_lg_u32 s45, 0")
            A("s_cbranch_scc1 L_spin")
            A("s_branch L_end")
        A("s_mov_b64 exec, 1")
        A("s_lshl_b32 s3, s3, 2")
        A("v_mov_b32 v4, s3")
        for i in range(nst[0]):
            A(f"v_mov_b32 v2, s{56 + 4 * i}")
            A(f"v_mov_b32 v3, s{58 + 4 * i}")
            A(f"global_store_dwordx2 v4, v[2:3], s[18:19] offset:{8 * i}")
    A("L_end:")
    A("s_endpgm")
    cyc, stall = simulate(A.ins[main0:main1])
    kinds = {}
    for i in A.ins[main0:main1]:
        if i.real:
            kinds[i.kind] = kinds.get(i.kind, 0) + 1
    print(f"main: model {cyc} cycles ({cyc / NP:.1f}/unit), matrix stall {stall}, {kinds}; convU {convU}; slots {NS}; prologue model {simulate(A.ins[:main0])[0]}")
    return A


HEAD = """; @launch grid=(256,1,1) block=(256,1,1) lds={lds}
.amdgcn_target "amdgcn-amd-amdhsa--gfx950"
.text
.globl {n}_kernel
.p2align 8
.type {n}_kernel,@function
{n}_kernel:
"""
TAIL = """.section .rodata,"a"
.p2align 6
.amdhsa_kernel {n}_kernel
  .amdhsa_next_free_vgpr 360
  .amdhsa_next_free_sgpr 96
  .amdhsa_accum_offset 256
  .amdhsa_group_segment_fixed_size 0
  .amdhsa_kernarg_size 88
  .amdhsa_user_sgpr_count 2
  .amdhsa_user_sgpr_kernarg_segment_ptr 1
  .amdhsa_system_sgpr_workgroup_id_x 1
.end_amdhsa_kernel
"""

if __name__ == "__main__":
    out = sys.argv[1]
    for kv in sys.argv[2:]:
        k, val = kv.split("=", 1)
        assert hasattr(Cfg, k), k
        setattr(Cfg, k, eval(val))
    A = gen(Cfg)
    open(out, "w").write(HEAD.format(n=NAME, lds=LDS_BYTES) + A.text() + TAIL.format(n=NAME))
    print("instructions:", sum(i.real for i in A.ins), "pads:", A.pads, "max vgpr:", A.maxv(), "lds:", LDS_BYTES)
```

```python
import sys, struct, math
from asmlib import Asm, Ins, size_of, simulate

NAME = "standalone__factorization_afm__recsys"
FS = 640
CS = 160
BS = 26 * FS
WS = 2 * BS
LDS_BYTES = 4 * WS
UB = 82
NP = 2 * UB


def f32(x):
    return "0x%08x" % struct.unpack("<I", struct.pack("<f", x))[0]


def v(a, n=1):
    return f"v{a}" if n == 1 else f"v[{a}:{a + n - 1}]"


def a_(a, n=1):
    return f"a{a}" if n == 1 else f"a[{a}:{a + n - 1}]"


def lanemask(fn):
    m = 0
    for l in range(64):
        if fn(l):
            m |= 1 << l
    return m


class Cfg:
    chunks = [[7, 7, 7, 7, 7, 6], [7, 7, 7, 7, 7, 6]]
    NB = 11
    stamps = False
    gflags = ""
    D0 = 7
    nstart = 4
    lead = 4
    lead2 = 8
    gpace = 3
    rate = 3.1
    codepf = True
    diag = None
    comp = 1.0028
    target = 3


def gen(cfg=Cfg):
    A = Asm()
    NB = cfg.NB
    vAI, vA0, vAM, vW1, vW3, vCH, vGA, vSIDX, vMASK, vM = 1, 2, [None, 3, 4, 5], 6, 7, 8, [9, 10], 11, 12, 13
    vT = [14, 15]
    vNM, vL, vACC = [[16, 17], [20, 21]], [18, 22], [19, 23]
    IDX, PH, PL, X = 24, 32, [36, 40], [44, 60]
    BIAS, RR, WP, ALIN, AABS, SEL, CV, TILE = 76, 92, 100, 108, 124, 132, 136, 152
    S0 = TILE + 2 * NB + 2
    NS = (256 - S0) // 8
    SLOT = [S0 + 8 * i for i in range(NS)]
    assert NS >= 10
    WRAW, HRAW, BRAW, PRAW, SEL1, DH, DP, G0 = SLOT[0], SLOT[1], SLOT[2], SLOT[3], SLOT[4], SLOT[5], SLOT[7], SLOT[9]
    HS, HL = G0 + 4, G0 + 6
    DW, DU = X
    SH = CV
    sW, sADJ, sK, sWW, sQ, sSC, sOSC, sGC = 28, 29, 30, 31, 46, 47, 48, 49
    sDONE = 50
    sSELM = 32
    mf = "v_mfma_f32_32x32x16_bf16"
    mh = "v_mfma_f32_32x32x16_f16"
    ml = "v_mfma_f32_16x16x32_f16"

    def smask(reg, m):
        A(f"s_mov_b32 s{reg}, 0x{m & 0xffffffff:08x}")
        A(f"s_mov_b32 s{reg + 1}, 0x{m >> 32:08x}")
    nst = [0]

    def stamp():
        if cfg.stamps:
            i = nst[0]
            nst[0] += 1
            A.raw(f"s_memtime s[{56 + 4 * i}:{57 + 4 * i}]")
            A.raw(f"s_memrealtime s[{58 + 4 * i}:{59 + 4 * i}]")
            if A.lg or i >= 3:
                A("s_waitcnt lgkmcnt(0)")
                A("s_nop 0")

    A("s_cmp_ge_u32 s2, 256")
    A("s_cbranch_scc1 L_end")
    A("s_load_dwordx4 s[4:7], s[0:1], 0")
    A("s_load_dwordx8 s[8:15], s[0:1], 32")
    A("s_load_dwordx2 s[16:17], s[0:1], 64")
    if cfg.stamps:
        A("s_load_dwordx2 s[18:19], s[0:1], 80")
        A("s_load_dwordx2 s[52:53], s[0:1], 72")
        A.raw("s_memtime s[56:57]")
        A.raw("s_memrealtime s[58:59]")
        nst[0] = 1
    A("v_lshrrev_b32 v1, 6, v0")
    A(f"s_mov_b32 s{sADJ}, 0")
    A(f"v_readfirstlane_b32 s{sW}, v1")
    A(f"s_mov_b64 s[{sDONE}:{sDONE + 1}], 0")
    if cfg.codepf:
        A("s_getpc_b64 s[40:41]")
        A("L_pc:")
        if cfg.codepf == 1:
            A("s_bitcmp1_b32 s2, 3")
            A("s_cselect_b32 s3, 0x8000, 0")
            A("v_lshl_add_u32 v1, v0, 7, s3")
        else:
            A("s_bfe_u32 s3, s2, 0x30003")
            A("s_mul_i32 s3, s3, 0x1400")
            A("v_mul_u32_u24 v1, 20, v0")
            A("v_add_u32 v1, s3, v1")
        A("v_min_u32 v1, L_end-L_pc, v1")
        A("global_load_dword a0, v1, s[40:41]")
    A("L_retry:")
    A("v_and_b32 v13, 63, v0")
    A("v_lshrrev_b32 v14, 5, v13")
    A(f"v_and_b32 {v(vCH)}, 3, v0")
    A(f"v_lshlrev_b32 {v(vCH)}, 4, {v(vCH)}")
    A("v_bfe_u32 v15, v0, 2, 3")
    A("v_lshl_add_u32 v16, v15, 1, v14")
    A("v_mul_u32_u24 v16, 52, v16")
    A(f"v_min_u32 v17, 36, {v(vCH)}")
    A("s_lshl_b32 s3, s2, 2")
    A(f"s_add_u32 s3, s3, s{sW}")
    A("s_mul_i32 s42, s3, 1664")
    A("v_add3_u32 v16, v16, v17, s42")
    A("v_and_b32 v17, 19, v0")
    A("v_and_b32 v18, 4, v0")
    A("v_lshl_or_b32 v17, v18, 1, v17")
    A("v_and_b32 v18, 8, v0")
    A("v_lshrrev_b32 v18, 1, v18")
    A("v_or_b32 v17, v17, v18")
    A("v_lshlrev_b32 v18, 4, v14")
    A("v_lshl_or_b32 v19, v17, 6, v18")
    A("v_lshlrev_b32 v17, 1, v17")
    A("v_and_b32 v20, 16, v0")
    A("v_lshl_or_b32 v20, v14, 3, v20")
    A(f"v_mov_b32 {v(HL)}, 0")
    pre = [
        f"s_mul_i32 s43, s{sW}, {WS}",
        f"v_mul_u32_u24 v21, 10, {v(vCH)}",
        "v_lshl_add_u32 v21, v15, 4, v21",
        f"v_mul_u32_u24 v22, {FS}, v14",
        f"v_add3_u32 {v(vW1)}, v21, v22, s43",
        f"v_lshl_add_u32 {v(vW3)}, v22, 1, {v(vW1)}",
        f"v_mul_u32_u24 v21, {CS}, v14",
        "v_and_b32 v22, 7, v0",
        "v_lshlrev_b32 v22, 4, v22",
        f"v_add3_u32 {v(vAI)}, v21, v22, s43",
        "v_bfe_u32 v21, v0, 3, 2",
        f"s_movk_i32 s44, {FS}",
        f"v_mad_u32_u24 {v(vA0)}, v21, s44, {v(vAI)}",
    ]
    for c in (1, 2, 3):
        pre += [f"v_subrev_u32 v22, {c}, v21", "v_and_b32 v22, 7, v22", f"v_mad_u32_u24 {v(vAM[c])}, v22, s44, {v(vAI)}"]
    for t in pre:
        A(t)
    A("s_waitcnt lgkmcnt(0)")
    A(f"global_load_dwordx4 {v(IDX, 4)}, v16, s[4:5]")
    A(f"global_load_dwordx4 {v(WRAW, 4)}, v19, s[8:9]")
    A(f"global_load_dwordx4 {v(WRAW + 4, 4)}, v19, s[8:9] offset:32")
    A(f"global_load_dwordx4 {v(HRAW, 4)}, v18, s[12:13]")
    A(f"global_load_dwordx4 {v(HRAW + 4, 4)}, v18, s[12:13] offset:32")
    A(f"global_load_dwordx4 {v(PRAW, 4)}, v18, s[14:15]")
    A(f"global_load_dwordx4 {v(PRAW + 4, 4)}, v18, s[14:15] offset:32")
    A(f"global_load_dwordx4 {v(BRAW, 4)}, v18, s[10:11]")
    A(f"global_load_dwordx4 {v(BRAW + 4, 4)}, v18, s[10:11] offset:32")
    A(f"global_load_short_d16_hi {v(HL)}, v17, s[12:13]")
    A(f"global_load_dwordx2 {v(HS, 2)}, v20, s[12:13] offset:32")
    A(f"global_load_dwordx4 {v(IDX + 4, 4)}, v16, s[4:5] offset:832")
    stamp()
    A("s_mov_b32 s20, s6")
    A("s_mov_b32 s21, s7")
    A("s_mov_b32 s22, 6400000")
    A("s_mov_b32 s23, 0x00020000")
    A("s_mov_b32 s24, s16")
    A("s_mov_b32 s25, s17")
    A("s_mov_b32 s26, 32768")
    A("s_mov_b32 s27, 0x00020000")
    A(f"v_and_b32 {v(SH)}, 1, v0")
    A(f"v_lshlrev_b32 {v(SH)}, 4, {v(SH)}")
    A("s_movk_i32 s44, 0x3f80")
    A(f"v_lshlrev_b32_e64 v21, {v(SH)}, s44")
    for R in (4, 5, 6, 7, 0, 1, 2, 3):
        m = lanemask(lambda l: (l >> 5) == ((l >> 2) & 1) and ((l >> 1) & 1) + 2 * ((l >> 3) & 3) == R)
        sm_ = sSELM + 2 * (R & 3)
        smask(sm_, m)
        A(f"v_cndmask_b32_e64 {v(SEL1 + R)}, 0, v21, s[{sm_}:{sm_ + 1}]")
    A(f"v_mov_b32 {v(vSIDX)}, 0xdddd")
    A("v_mov_b32 v21, 0xff800000")
    smask(40, lanemask(lambda l: 8 <= l < 32))
    A(f"v_cndmask_b32_e64 {v(vMASK)}, 0, v21, s[40:41]")

    def g_addr(t):
        b, tt = divmod(t, 13)
        ql, k = (tt // 4, tt % 4) if tt < 12 else (3, 3)
        return f"v_add_u32_dpp {v(vGA[t & 1])}, {v(IDX + 4 * b + k)}, {v(vCH)} quad_perm:[{ql},{ql},{ql},{ql}] row_mask:0xf bank_mask:0xf"
    greg = lambda t: v(G0, 4) if t == 0 else a_(4 * t, 4)
    gkey = lambda t: ("v", G0) if t == 0 else ("a", 4 * t)

    def g_load(t):
        return f"buffer_load_dwordx4 {greg(t)}, {v(vGA[t & 1])}, s[20:23], 0 offen {cfg.gflags}".strip()
    A.wait_vm_for([("v", IDX)])
    stamp()
    for k in range(4):
        A(f"v_lshlrev_b32 {v(IDX + k)}, 6, {v(IDX + k)}")
    for t in range(cfg.D0):
        A(g_addr(t))
        A(g_load(t))
    gnext = [cfg.D0]
    A.wait_vm_for([("v", IDX + 4)])
    stamp()
    A(f"{mf} {v(DW, 16)}, {v(WRAW, 4)}, {v(SEL1, 4)}, 0")
    A(f"{mf} {v(DW, 16)}, {v(WRAW + 4, 4)}, {v(SEL1 + 4, 4)}, {v(DW, 16)}")
    for k in range(4):
        A(f"v_lshlrev_b32 {v(IDX + 4 + k)}, 6, {v(IDX + 4 + k)}")
    A(f"{mf} {v(DP, 16)}, {v(SEL1, 4)}, {v(PRAW, 4)}, 0")
    A("s_mov_b32 s44, 0x80008000")
    A("v_mov_b32 v21, 0x3f803f80")
    for k in range(2):
        A(f"v_and_or_b32 {v(HS + k)}, {v(HS + k)}, s44, v21")
    A(f"{mf} {v(DP, 16)}, {v(SEL1 + 4, 4)}, {v(PRAW + 4, 4)}, {v(DP, 16)}")
    rest_m = [
        f"{mf} {v(DH, 16)}, {v(SEL1, 4)}, {v(HRAW, 4)}, 0",
        f"{mf} {v(DH, 16)}, {v(SEL1 + 4, 4)}, {v(HRAW + 4, 4)}, {v(DH, 16)}",
        f"{mf} {v(BIAS, 16)}, {v(SEL1, 4)}, {v(BRAW, 4)}, 0",
        f"{mf} {v(BIAS, 16)}, {v(SEL1 + 4, 4)}, {v(BRAW + 4, 4)}, {v(BIAS, 16)}",
        f"{mf} {v(DU, 16)}, {v(WRAW, 4)}, {v(HRAW, 4)}, 0",
        f"{mf} {v(DU, 16)}, {v(WRAW + 4, 4)}, {v(HRAW + 4, 4)}, {v(DU, 16)}",
    ]
    for par in range(2):
        for sg in range(2):
            smask(40 + 2 * sg, lanemask(lambda l: (l & 15) == 8 * par + 4 * sg))
            for k in range(2):
                A(f"v_cndmask_b32_e64 {v(AABS + 4 * par + 2 * sg + k)}, 0, {v(HS + k)}, s[{40 + 2 * sg}:{41 + 2 * sg}]")
        A(rest_m.pop(0))
    A(f"v_max_f32_e64 v13, |{v(DW)}|, |{v(DW + 1)}|")
    for k in range(1, 8):
        A(f"v_max3_f32 v13, |{v(DW + 2 * k)}|, |{v(DW + 2 * k + 1)}|, v13")
        if k == 5:
            A(rest_m.pop(0))
    A(f"v_mul_f32_e64 v13, v13, |{v(HL)}|")
    fill = [f"v_max_f32_e64 v14, |{v(DP)}|, |{v(DP + 1)}|"]
    fill += [f"v_max3_f32 v14, |{v(DP + 2 * k)}|, |{v(DP + 2 * k + 1)}|, v14" for k in range(1, 8)]
    fill += ["v_mov_b32 v15, v14"]
    fill += [f"v_xor_b32 {v(RR + k)}, {v(DH + k)}, {v(DH + 8 + k)}" for k in range(8)]

    def filler(n=2):
        for _ in range(n):
            if fill:
                A(fill.pop(0))
    for i, ctl in enumerate(("quad_perm:[1,0,3,2]", "quad_perm:[2,3,0,1]", "row_half_mirror", "row_mirror")):
        filler()
        A(f"v_max_f32_dpp v13, v13, v13 {ctl} row_mask:0xf bank_mask:0xf")
        if i & 1 == 0:
            A(rest_m.pop(0))
    A("v_mov_b32 v16, v13")
    filler()
    A("v_permlane16_swap_b32 v13, v16")
    A(rest_m.pop(0))
    A("v_max_f32 v13, v13, v16")
    A("v_permlane32_swap_b32 v14, v15")
    A("v_mov_b32 v16, v13")
    A("v_max_f32 v14, v14, v15")
    filler(1)
    A("v_permlane32_swap_b32 v13, v16")
    A(f"v_readfirstlane_b32 s{sQ}, v14")
    A("v_max_f32 v13, v13, v16")
    filler(1)
    A(f"v_readfirstlane_b32 s{sWW}, v13")
    filler(16)
    assert not rest_m
    A(f"s_lshr_b32 s{sQ}, s{sQ}, 23")
    A(f"s_sub_i32 s{sQ}, 141, s{sQ}")
    A(f"s_min_i32 s{sQ}, s{sQ}, 40")
    A(f"s_lshl_b32 s44, s{sQ}, 23")
    A("s_add_u32 s44, s44, 0x3f800000")
    A(f"s_lshr_b32 s{sWW}, s{sWW}, 23")
    A(f"s_sub_i32 s{sWW}, 136, s{sWW}")
    A(f"s_min_i32 s{sWW}, s{sWW}, 40")
    A(f"s_lshl_b32 s45, s{sWW}, 23")
    A(f"s_add_u32 s{sGC}, s45, {f32(0.5 * math.log2(math.e) * cfg.comp)}")
    A(f"s_add_u32 s45, s45, {f32(0.5 * math.log2(math.e))}")
    A(f"v_mul_f32_e64 v13, s{sGC}, |{v(HL)}|")
    smask(40, lanemask(lambda l: l & 1))
    A("v_mov_b32 v14, s45")
    A("v_mov_b32 v15, s44")
    A("v_cndmask_b32_e64 v14, v14, v15, s[40:41]")
    for k in range(16):
        A(f"v_mul_f32 {v(DW + k)}, v13, {v(DW + k)}")
        A(f"v_cndmask_b32_e64 {v(DU + k)}, {v(DU + k)}, {v(DP + k)}, s[40:41]")
    smask(40, lanemask(lambda l: ((l >> 3) & 1) == 0 and not (l & 2) and ((l >> 2) & 1) == ((l >> 4) & 1)))
    smask(42, lanemask(lambda l: ((l >> 3) & 1) == 1 and not (l & 2) and ((l >> 2) & 1) == ((l >> 4) & 1)))
    A("s_brev_b32 s44, 1")
    for k in range(16):
        A(f"v_mul_f32 {v(DU + k)}, v14, {v(DU + k)}")
        A(f"v_mul_f32_e64 {v(BIAS + k)}, {v(BIAS + k)}, |{v(DH + k)}|")
    for k in range(8):
        A(f"v_cvt_pk_f16_f32 {v(DU + k)}, {v(DU + 2 * k)}, {v(DU + 2 * k + 1)}")
        A(f"v_cvt_pk_f16_f32 {v(WP + k)}, {v(DW + 2 * k)}, {v(DW + 2 * k + 1)}")
        A(f"v_cndmask_b32_e64 {v(ALIN + k)}, 0, {v(DU + k)}, s[40:41]")
        A(f"v_cndmask_b32_e64 {v(ALIN + 8 + k)}, 0, {v(DU + k)}, s[42:43]")
        A(f"v_and_or_b32 {v(RR + k)}, {v(RR + k)}, s44, 1.0")
    stamp()
    if cfg.diag and cfg.diag[0] < 0:
        A("s_and_b32 s44, s3, 0x3e3")
        A("s_cmp_lg_u32 s44, 0")
        A("s_cbranch_scc1 L_nopub")
        A("s_not_b32 s44, s58")
        A("v_mov_b32 v13, s44")
        A("v_mov_b32 v14, 0")
        A("s_mov_b64 exec, 1")
        A.raw("global_atomic_umax v14, v13, s[52:53] sc1")
        A.raw("s_waitcnt vmcnt(0)")
        A("s_mov_b64 exec, -1")
        A("L_nopub:")
    A.wait_vm_for([gkey(0)])
    stamp()
    neg = "neg_lo:[0,1,0] neg_hi:[0,1,0]"
    A(f"v_pk_maximum3_f16 v13, {v(G0)}, {v(G0)}, 0 {neg}")
    A(f"v_pk_maximum3_f16 v14, {v(G0 + 1)}, {v(G0 + 1)}, 0 {neg}")
    A(f"v_pk_maximum3_f16 v13, {v(G0 + 2)}, {v(G0 + 2)}, v13 {neg}")
    A(f"v_pk_maximum3_f16 v14, {v(G0 + 3)}, {v(G0 + 3)}, v14 {neg}")
    A("v_pk_max_u16 v13, v13, v14")
    A("v_max_u32_sdwa v13, v13, v13 dst_sel:DWORD dst_unused:UNUSED_PAD src0_sel:WORD_0 src1_sel:WORD_1")
    A(g_addr(gnext[0]))
    A(g_load(gnext[0]))
    gnext[0] += 1
    A("v_max_u32_dpp v13, v13, v13 quad_perm:[1,0,3,2] row_mask:0xf bank_mask:0xf")
    A("v_max_u32_dpp v13, v13, v13 quad_perm:[2,3,0,1] row_mask:0xf bank_mask:0xf")
    A("v_mov_b32 v14, v13")
    A("v_permlane32_swap_b32 v13, v14")
    A("v_max_u32 v13, v13, v14")
    A("v_add_u32 v13, -1, v13")
    A("v_min_u32_dpp v13, v13, v13 row_ror:4 row_mask:0xf bank_mask:0xf")
    A("v_min_u32_dpp v13, v13, v13 row_ror:8 row_mask:0xf bank_mask:0xf")
    A("v_readlane_b32 s44, v13, 0")
    A("v_readlane_b32 s45, v13, 16")
    A("s_min_u32 s44, s44, s45")
    A("s_add_u32 s44, s44, 1")
    A("s_bfe_u32 s44, s44, 0x80007")
    A(f"s_sub_i32 s{sK}, {127 + cfg.target}, s44")
    A(f"s_min_i32 s{sK}, s{sK}, 40")
    A(f"s_sub_i32 s{sK}, s{sK}, s{sADJ}")
    A(f"s_max_i32 s{sK}, s{sK}, -64")
    A(f"s_add_i32 s44, s{sK}, 127")
    A("s_lshl_b32 s44, s44, 7")
    A(f"v_lshlrev_b32_e64 v13, {v(SH)}, s44")
    for R in range(4):
        A(f"v_cndmask_b32_e64 {v(SEL + R)}, 0, v13, s[{sSELM + 2 * R}:{sSELM + 2 * R + 1}]")

    gpos = []
    vecs = []
    pairs = []
    CC = [0, 1, -1, 2, -2, 3, -3, 4]
    for b in range(2):
        g0, base = 13 * b, b * BS
        gpos.append((vW1, base))
        def vec(reg, pos, g):
            vecs.append(dict(reg=reg, off=base + pos * FS, g=g, slot=None, issued=0))
            return vecs[-1]
        I = [vec(vAI, 0, g0), vec(vAI, 1, g0)]
        pairs.append((I[0], I[1]))
        reps = []
        for bb in range(3):
            p0, gb = 2 + 8 * bb, g0 + 1 + 4 * bb
            gpos.extend([(vW1, base + p0 * FS), (vW1, base + (p0 + 2) * FS), (vW3, base + (p0 + 4) * FS), (vW1, base + (p0 + 5) * FS)])
            prev, mine = None, []
            for k, c in enumerate(CC):
                g = gb + (1 if k == 0 else 2 if k < 3 else 3)
                x = vec(vA0, p0 + c, g) if c >= 0 else vec(vAM[-c], p0, g)
                if prev is not None:
                    pairs.append((prev, x))
                for r in reps:
                    pairs.append((x, r))
                if k in (0, 7):
                    pairs.extend([(x, I[0]), (x, I[1])])
                    mine.append(x)
                prev = x
            reps += mine
    assert len(pairs) == NP and len(gpos) == 26
    for n, pr in enumerate(pairs):
        for x in pr:
            x.setdefault("first", n)
            x["last"] = n
    need = [min(x["first"] for x in vecs if x["g"] >= t) for t in range(26)]
    convU = [None] * 26
    nxt = 10 ** 9
    for t in range(25, -1, -1):
        lead = cfg.lead if t < 9 else cfg.lead2
        convU[t] = min(need[t] - lead, nxt - (1 if t < 9 else 2))
        if t < cfg.nstart:
            convU[t] = -1
        assert t < cfg.nstart or convU[t] >= 0, (t, convU[t])
        nxt = convU[t]
    cur = [-1]
    written = [-1]
    free = list(range(NS))
    rq = [(x, q) for x in vecs for q in range(2)]

    def c_ops(d):
        return [f"v_cvt_pk_f16_f32 {v(d + k)}, {v(d + 2 * k)}, {v(d + 2 * k + 1)}" for k in range(4)]

    def c_m(t, d):
        return f"{mf} {v(d, 16)}, {v(SEL, 4)}, {greg(t)}, 0"

    def c_w(t, d):
        written[0] = t
        return f"ds_write_b128 {v(gpos[t][0])}, {v(d, 4)} offset:{gpos[t][1]}"

    def can_read():
        if not rq:
            return False
        x, q = rq[0]
        return x["g"] <= written[0] and (x["slot"] is not None or bool(free))

    def do_read():
        x, q = rq.pop(0)
        if x["slot"] is None:
            x["slot"] = free.pop(0)
        x["issued"] += 1
        x["at"] = cur[0]
        A(f"ds_read_b128 {v(SLOT[x['slot']] + 4 * q, 4)}, {v(x['reg'])} offset:{x['off'] + q * 2 * CS}")

    late = [f"v_mul_f32 {v(BIAS + k)}, v14, {v(BIAS + k)}" for k in range(16)]
    win = [CV, X[0], X[1]]
    A(c_m(0, win[0]))
    A(f"s_lshl_b32 s44, s{sK}, 1")
    A(f"v_mov_b32 v14, s{sGC}")
    A(f"s_add_i32 s45, s44, s{sWW}")
    A("v_ldexp_f32 v14, v14, s44")
    A("s_sub_i32 s45, 127, s45")
    A("s_min_i32 s45, s45, 255")
    A(f"s_lshl_b32 s{sSC}, s45, 23")
    A(f"s_add_i32 s45, s44, s{sQ}")
    A("s_sub_i32 s45, 127, s45")
    A("s_min_i32 s45, s45, 255")
    A(f"s_lshl_b32 s{sOSC}, s45, 23")
    for t in range(1, cfg.nstart + 1):
        if t < cfg.nstart:
            A.wait_vm_for([gkey(t)])
            A(c_m(t, win[t % 3]))
            A(g_addr(gnext[0]))
            A(g_load(gnext[0]))
            gnext[0] += 1
        k = len(late) if t == cfg.nstart else 4
        if t > 1:
            for o in late[:k]:
                A(o)
            late = late[k:]
        for o in c_ops(win[(t - 1) % 3]):
            A(o)
        A(c_w(t - 1, win[(t - 1) % 3]))
        while can_read():
            do_read()
    stamp()

    def P(n, k):
        xa, xb = pairs[n]
        d = PL[n & 1] + k if k < 4 else PH + k - 4
        A(f"v_pk_mul_f16 {v(d)}, {v(SLOT[xa['slot']] + k)}, {v(SLOT[xb['slot']] + k)}")

    def F(n, k):
        x = X[n & 1]
        A(f"v_fma_f32 {v(x + k)}, |{v(x + k)}|, {v(RR + k)}, |{v(x + 8 + k)}|")
    tile = lambda T: TILE + 2 * (T % NB)

    sm, maxq = [], []
    for b in range(2):
        T0 = 41 * b
        chunks = cfg.chunks[b]
        assert sum(chunks) == 41
        nch = len(chunks)
        L_, ACC = vL[b], vACC[b]
        for c, sz in enumerate(chunks):
            Ts = list(range(T0, T0 + sz))
            T0 += sz
            pend = []
            for T in Ts:
                if T == 41 * b:
                    maxq.append((2 * T + 3, 1, f"v_add_f32@ {v(tile(T))}, {v(tile(T))}, {v(vMASK)}", T))
                pend.append(T)
                first = c == 0 and pend[0] == Ts[0]
                if first and sz & 1:
                    if len(pend) == 3:
                        maxq.append((2 * T + 3, 1, f"v_max3_f32 {v(vM)}, {v(tile(pend[0]))}, {v(tile(pend[1]))}, {v(tile(pend[2]))}", pend[0]))
                        pend = []
                elif len(pend) == 2:
                    if first:
                        maxq.append((2 * T + 3, 1, f"v_max_f32@ {v(vM)}, {v(tile(pend[0]))}, {v(tile(pend[1]))}", pend[0]))
                    else:
                        maxq.append((2 * T + 3, 1, f"v_max3_f32 {v(vM)}, {v(tile(pend[0]))}, {v(tile(pend[1]))}, {v(vM)}", pend[0]))
                    pend = []
            if pend:
                maxq.append((2 * pend[0] + 3, 1, f"v_max_f32@ {v(vM)}, {v(tile(pend[0]))}, {v(vM)}", pend[0]))
            ready = 2 * Ts[-1] + 3
            nm, old = vNM[b][(nch - 1 - c) & 1], vNM[b][(nch - c) & 1]
            add = lambda cost, text, T=None, gate=0: sm.append((ready, cost, text, T, gate))
            add(1, f"v_mul_f32_e64 {v(nm)}, -{v(vM)}, s{sSC}", None, len(maxq))

            def head(T):
                add(1, f"v_fma_f32 {v(vT[T & 1])}, {v(tile(T))}, s{sSC}, {v(nm)}", T)
                add(2, f"v_exp_f32@ {v(vT[T & 1])}, {v(vT[T & 1])}")

            def tailops(T):
                t = vT[T & 1]
                if c == 0 and T == Ts[0]:
                    add(1, f"v_mul_f32@ {v(ACC)}, {v(t)}, {v(tile(T) + 1)}", T)
                    return
                add(1, f"v_fmac_f32@ {v(ACC)}, {v(t)}, {v(tile(T) + 1)}", T)
                if c == 0 and T == Ts[1]:
                    add(1, f"v_add_f32@ {v(L_)}, {v(vT[0])}, {v(vT[1])}")
                elif T == Ts[0]:
                    add(1, f"v_fma_f32 {v(L_)}, {v(L_)}, {v(old)}, {v(t)}")
                else:
                    add(1, f"v_add_f32@ {v(L_)}, {v(L_)}, {v(t)}")
            if c:
                add(1, f"v_sub_f32@ {v(old)}, {v(nm)}, {v(old)}")
                add(2, f"v_exp_f32@ {v(old)}, {v(old)}")
            head(Ts[0])
            if c:
                add(1, f"v_mul_f32@ {v(ACC)}, {v(ACC)}, {v(old)}")
                rest = Ts
            else:
                head(Ts[1])
                tailops(Ts[0])
                tailops(Ts[1])
                head(Ts[2])
                rest = Ts[2:]
            for i, T in enumerate(rest):
                if i + 1 < len(rest):
                    head(rest[i + 1])
                tailops(T)
    st = dict(credit=0.0, maxdone=0, odd=False)

    def emit(text):
        if "@" in text:
            A(text.replace("@", "_e32" if st["odd"] else "_e64"))
            st["odd"] = False
        else:
            if st["odd"]:
                A("s_nop 0")
                st["odd"] = False
            A(text)

    def small(text):
        A(text)
        st["odd"] = not st["odd"]

    def align():
        if st["odd"]:
            A("s_nop 0")
            st["odd"] = False

    def softmax_slots(n, budget, late_pos=False):
        used = cnt = 0
        while True:
            lim = next((s_[4] for s_ in sm if s_[4]), 10 ** 9)
            if maxq and maxq[0][0] <= n and st["maxdone"] < lim and used < budget:
                it = maxq.pop(0)
                st["maxdone"] += 1
            elif sm and sm[0][0] <= n and used < budget and (sm[0][4] == 0 or st["maxdone"] >= sm[0][4]):
                it = sm.pop(0)
            else:
                break
            if it[3] is not None:
                assert n + late_pos <= 2 * (it[3] + NB - 1), f"tile {it[3]} read too late in unit {n}"
            emit(it[2])
            used += it[1]
            cnt += 1
        return used, cnt

    def urgent(n0):
        return any(n0 + i > x["first"] - 3 for i, (x, q) in enumerate(rq[:8]))

    def hook(n, nxt_h2):
        if can_read() and urgent(nxt_h2):
            do_read()
            return 1
        return 0

    def lg_count(n):
        regs = {("v", SLOT[x["slot"]] + k) for x in pairs[n] for k in range(8) if x["slot"] is not None}
        last = max([i for i, q in enumerate(A.lg) if q[0] & regs], default=-1)
        return [f"lgkmcnt({len(A.lg) - 1 - last})"] if last >= 0 else []

    def lg_wait(n):
        w_ = lg_count(n)
        if w_:
            small("s_waitcnt " + w_[0])
        return len(w_)

    lg_wait(0)
    lg_wait(1)
    st["odd"] = False
    A(".p2align 3")
    for k in range(4):
        P(0, k)
    A("s_nop 0")
    A("s_nop 0")
    A.nopad = True
    main0 = len(A.ins)
    pend_c = None
    g_ready = None
    lastg = -10
    for n in range(NP + 1):
        live = n < NP
        cur[0] = n
        x, T, par = X[n & 1], n >> 1, n & 1
        if n >= NP - 1:
            A.nopad = False
        if live:
            A(f"{mh} {v(x, 16)}, {v(WP, 4)}, {v(PL[par], 4)}, {v(BIAS, 16)}")
            hook(n, n)
            for k in range(4, 8):
                P(n, k)
            for xx in pairs[n]:
                if xx["last"] == n:
                    free.append(xx["slot"])
        if n:
            F(n - 1, 2)
            F(n - 1, 3)
        else:
            A("s_nop 0")
            A("s_nop 0")
        extra = 0
        if live:
            A(f"{mh} {v(x, 16)}, {v(WP + 4, 4)}, {v(PH, 4)}, {v(x, 16)}")
            if n + 1 < NP:
                assert all(xx["issued"] == 2 for xx in pairs[n + 1]), f"vectors of pair {n + 1} not issued"
                if lg_wait(n + 1):
                    align()
                    extra += 2
                else:
                    extra += hook(n, n)
        if n:
            for k in range(4, 8):
                F(n - 1, k)
        if n + 1 < NP:
            P(n + 1, 0)
            P(n + 1, 1)
        if n:
            A(f"v_smfmac_f32_16x16x64_bf16 {v(tile((n - 1) >> 1), 4)}, {v(AABS + 4 * ((n - 1) & 1), 4)}, {v(X[(n - 1) & 1], 8)}, {v(vSIDX)}")
        conv_here = live and n in convU
        if can_read():
            do_read()
            extra += 1
        elif g_ready is not None:
            A(g_load(g_ready))
            g_ready = None
            extra += 1
        w_ = []
        if conv_here:
            t = convU.index(n)
            assert t < gnext[0] and t != g_ready, f"gather {t} not issued"
            last = max([i for i, q in enumerate(A.vm) if gkey(t) in q[0]], default=-1)
            if last >= 0:
                w_.append(f"vmcnt({len(A.vm) - 1 - last})")
        if n + 2 < NP and all(xx["issued"] == 2 and xx["at"] < n for xx in pairs[n + 2]):
            w_ += lg_count(n + 2)
        if w_:
            small("s_waitcnt " + " ".join(w_))
            extra += 1
        st["credit"] += cfg.rate
        cnt = 0
        if pend_c is not None:
            for o in c_ops(CV):
                emit(o)
            cnt += 4
        want_g = g_ready is None and gnext[0] < 26 and n - lastg >= cfg.gpace
        if want_g and not conv_here:
            emit(g_addr(gnext[0]))
            g_ready, lastg = gnext[0], n
            gnext[0] += 1
            cnt += 1
        soon = conv_here or (n + 1) in convU
        budget = (0 if cnt else 1) if soon else st["credit"]
        acc_ = sum(q_[1] for q_ in maxq if q_[0] <= n)
        for it in sm[:40]:
            if it[0] > n:
                break
            acc_ += it[1]
            if it[3] is not None:
                left = 2 * (it[3] + NB - 1) - n
                budget = max(budget, acc_ - 4 * left)
        used, c_ = softmax_slots(n, budget)
        st["credit"] -= used
        cnt += c_
        align()
        if live and extra + cnt < (6 if n == 0 else 1):
            A("s_nop 4" if n == 0 else "s_nop 0")
            A("s_nop 0")
        if live:
            A(f"{ml} {v(tile(T), 4)}, {v(ALIN + 8 * par, 4)}, {v(PL[par], 4)}, {v(tile(T), 4) if par else '0'}")
            if pend_c is not None:
                A(c_w(pend_c, CV))
                pend_c = None
            else:
                hook(n, n + 1)
        if n + 1 < NP:
            P(n + 1, 2)
            P(n + 1, 3)
        if live:
            A(f"{ml} {v(tile(T), 4)}, {v(ALIN + 8 * par + 4, 4)}, {v(PH, 4)}, {v(tile(T), 4)}")
            hook(n, n + 1)
            F(n, 0)
            F(n, 1)
        if conv_here:
            A(c_m(t, CV))
            hook(n, n + 1)
            pend_c = t
            k = 6
            if want_g:
                emit(g_addr(gnext[0]))
                g_ready, lastg = gnext[0], n
                gnext[0] += 1
                k -= 1
            used, c_ = softmax_slots(n, k, True)
            st["credit"] -= used
        st["credit"] = min(st["credit"], 6.0 if (n + 1) in convU else 2.0)
    softmax_slots(NP + 1, 10 ** 6)
    assert not sm and not maxq and not rq and gnext[0] == 26 and g_ready is None
    main1 = len(A.ins)
    stamp()
    n0, n1 = vNM[0][0], vNM[1][0]
    dpp8 = "row_ror:8 row_mask:0xf bank_mask:0xf"
    A(f"v_permlane32_swap_b32 {v(n0)}, {v(n1)}")
    A("s_lshl_b32 s3, s3, 5")
    A(f"v_min_f32 v13, {v(n0)}, {v(n1)}")
    A(f"v_permlane32_swap_b32 {v(vL[0])}, {v(vL[1])}")
    A("v_and_b32 v1, 7, v0")
    A(f"v_min_f32_dpp v13, v13, v13 {dpp8}")
    A("v_mov_b32 v14, v13")
    A(f"v_permlane32_swap_b32 {v(vACC[0])}, {v(vACC[1])}")
    A("v_bfe_u32 v2, v0, 5, 1")
    A("v_permlane16_swap_b32 v13, v14")
    A("v_min_f32 v13, v13, v14")
    A(f"v_sub_f32 {v(n0)}, v13, {v(n0)}")
    A(f"v_sub_f32 {v(n1)}, v13, {v(n1)}")
    A(f"v_exp_f32 {v(n0)}, {v(n0)}")
    A(f"v_exp_f32 {v(n1)}, {v(n1)}")
    A(f"v_mul_f32 v13, {v(n0)}, {v(vL[0])}")
    A(f"v_mul_f32 v14, {v(n0)}, {v(vACC[0])}")
    A(f"v_fmac_f32 v13, {v(n1)}, {v(vL[1])}")
    A(f"v_fmac_f32 v14, {v(n1)}, {v(vACC[1])}")
    A("v_lshl_add_u32 v1, v2, 3, v1")
    A("v_lshl_add_u32 v1, v1, 1, s3")
    A("v_permlane16_swap_b32 v13, v14")
    A("v_add_f32 v13, v13, v14")
    A("s_movk_i32 s44, 0x1f8")
    smask(40, lanemask(lambda l: (l & 24) == 0))
    A(f"v_add_f32_dpp v13, v13, v13 {dpp8}")
    A("v_mov_b32 v14, v13")
    A(f"s_cmp_le_i32 s{sK}, -64")
    A("s_cselect_b64 s[42:43], -1, 0")
    A("v_permlane16_swap_b32 v13, v14")
    A("v_rcp_f32 v13, v13")
    A(f"v_mul_f32 v14, s{sOSC}, v14")
    A("v_mul_f32 v13, v13, v14")
    A("v_cmp_class_f32_e64 vcc, v13, s44")
    A("v_cvt_pk_bf16_f32 v13, v13, v13")
    A(f"s_andn2_b64 s[40:41], s[40:41], s[{sDONE}:{sDONE + 1}]")
    A("s_or_b64 s[42:43], s[42:43], vcc")
    A("s_and_b64 exec, s[40:41], s[42:43]")
    A("s_cbranch_execz L_nostore")
    A("buffer_store_short v13, v1, s[24:27], 0 offen")
    A("L_nostore:")
    A(f"s_or_b64 s[{sDONE}:{sDONE + 1}], s[{sDONE}:{sDONE + 1}], exec")
    A("s_mov_b64 exec, -1")
    A(f"s_add_i32 s{sADJ}, s{sADJ}, 4")
    A("s_andn2_b64 s[40:41], s[40:41], s[42:43]")
    A("s_cbranch_scc1 L_retry")
    if cfg.stamps:
        A("s_waitcnt vmcnt(0)")
        stamp()
        if cfg.diag:
            i_, j_ = cfg.diag
            last_ = 58 + 4 * (nst[0] - 1)
            if i_ < 0:
                A("v_mov_b32 v4, 0")
                A("global_load_dword v3, v4, s[52:53] sc0 sc1")
                A("s_waitcnt vmcnt(0)")
                A("v_readfirstlane_b32 s44, v3")
                A("s_not_b32 s44, s44")
                A(f"s_sub_u32 s44, s{58 + 4 * j_}, s44")
            else:
                A(f"s_sub_u32 s44, s{58 + 4 * j_}, s{58 + 4 * i_}")
            A("s_max_i32 s44, s44, 0")
            A("s_lshl_b32 s44, s44, 3")
            A("s_min_u32 s44, s44, 30000")
            A("s_mov_b32 s45, 200000")
            A("L_spin:")
            A("s_memrealtime s[42:43]")
            A("s_waitcnt lgkmcnt(0)")
            A(f"s_sub_u32 s42, s42, s{last_}")
            A("s_cmp_ge_u32 s42, s44")
            A("s_cbranch_scc1 L_end")
            A("s_sub_u32 s45, s45, 1")
            A("s_cmp_lg_u32 s45, 0")
            A("s_cbranch_scc1 L_spin")
            A("s_branch L_end")
        A("s_mov_b64 exec, 1")
        A("s_lshl_b32 s3, s3, 2")
        A("v_mov_b32 v4, s3")
        for i in range(nst[0]):
            A(f"v_mov_b32 v2, s{56 + 4 * i}")
            A(f"v_mov_b32 v3, s{58 + 4 * i}")
            A(f"global_store_dwordx2 v4, v[2:3], s[18:19] offset:{8 * i}")
    A("L_end:")
    A("s_endpgm")
    cyc, stall = simulate(A.ins[main0:main1])
    kinds = {}
    for i in A.ins[main0:main1]:
        if i.real:
            kinds[i.kind] = kinds.get(i.kind, 0) + 1
    print(f"main: model {cyc} cycles ({cyc / NP:.1f}/unit), matrix stall {stall}, {kinds}; convU {convU}; slots {NS}; prologue model {simulate(A.ins[:main0])[0]}")
    return A


HEAD = """; @launch grid=(256,1,1) block=(256,1,1) lds={lds}
.amdgcn_target "amdgcn-amd-amdhsa--gfx950"
.text
.globl {n}_kernel
.p2align 8
.type {n}_kernel,@function
{n}_kernel:
"""
TAIL = """.section .rodata,"a"
.p2align 6
.amdhsa_kernel {n}_kernel
  .amdhsa_next_free_vgpr 360
  .amdhsa_next_free_sgpr 96
  .amdhsa_accum_offset 256
  .amdhsa_group_segment_fixed_size 0
  .amdhsa_kernarg_size 88
  .amdhsa_user_sgpr_count 2
  .amdhsa_user_sgpr_kernarg_segment_ptr 1
  .amdhsa_system_sgpr_workgroup_id_x 1
.end_amdhsa_kernel
"""

if __name__ == "__main__":
    out = sys.argv[1]
    for kv in sys.argv[2:]:
        k, val = kv.split("=", 1)
        assert hasattr(Cfg, k), k
        setattr(Cfg, k, eval(val))
    A = gen(Cfg)
    open(out, "w").write(HEAD.format(n=NAME, lds=LDS_BYTES) + A.text() + TAIL.format(n=NAME))
    print("instructions:", sum(i.real for i in A.ins), "pads:", A.pads, "max vgpr:", A.maxv(), "lds:", LDS_BYTES)
```

```python
import re

TRANS = ("v_exp_", "v_log_", "v_rcp_", "v_rsq_", "v_sqrt_", "v_sin_", "v_cos_")


def regs_of(tok):
    tok = tok.strip()
    tok = tok.lstrip("-").strip("|")
    m = re.fullmatch(r"([vas])(\d+)", tok)
    if m:
        return [(m.group(1), int(m.group(2)))]
    m = re.fullmatch(r"([vas])\[(\d+):(\d+)\]", tok)
    if m:
        return [(m.group(1), i) for i in range(int(m.group(2)), int(m.group(3)) + 1)]
    if tok == "vcc":
        return [("s", 106), ("s", 107)]
    if tok == "exec":
        return [("s", 126), ("s", 127)]
    if tok == "m0":
        return [("s", 124)]
    return []


class Ins:
    def __init__(self, text):
        self.text = text
        body = text.split(";")[0].strip()
        self.is_label = body.endswith(":")
        self.is_dir = body.startswith(".") and not self.is_label
        self.real = bool(body) and not self.is_label and not self.is_dir
        self.op = body.split()[0] if body else ""
        self.w, self.r, self.srcc, self.ab = [], [], [], []
        self.passes = 0
        self.tag = None
        self.kind = "none"
        if not self.real:
            return
        rest = body[len(self.op):].strip()
        ops = [t.strip() for t in re.split(r",(?![^\[]*\])", rest)] if rest else []
        if ops:
            last = ops[-1].split()
            ops[-1] = last[0] if last else ""
            self.mods = " ".join(last[1:])
        else:
            self.mods = ""
        op = self.op
        R = [regs_of(t) for t in ops]
        if op.startswith("v_mfma") or op.startswith("v_smfmac"):
            self.kind = "mfma"
            self.passes = 8 if "32x32" in op else (2 if "4x4" in op else 4)
            self.w = R[0]
            if op.startswith("v_smfmac"):
                self.ab = R[1] + R[2] + R[3]
                self.srcc = R[0]
            else:
                self.ab = R[1] + R[2]
                self.srcc = R[3]
            self.r = self.ab + self.srcc
        elif op.startswith("v_"):
            self.kind = "valu"
            self.w = list(R[0])
            self.r = [x for rr in R[1:] for x in rr]
            if op.startswith("v_permlane") and "swap" in op:
                self.w = R[0] + R[1]
                self.r = R[0] + R[1]
            if op.startswith(("v_fmac", "v_dot2c", "v_writelane")) or "_dpp" in op or "PRESERVE" in self.mods:
                self.r = self.r + R[0]
            if op.startswith("v_cmpx"):
                self.w = self.w + regs_of("exec")
        elif op.startswith(("buffer_load", "global_load")):
            self.kind = "vmem"
            if " lds" in " " + self.mods:
                self.r = [x for rr in R for x in rr]
            else:
                self.w = R[0]
                self.r = [x for rr in R[1:] for x in rr]
        elif op.startswith(("buffer_store", "global_store", "buffer_atomic", "global_atomic")):
            self.kind = "vmem"
            self.r = [x for rr in R for x in rr]
        elif op.startswith(("ds_read", "ds_bpermute", "ds_swizzle")) or re.match(r"ds_\w+_rtn_", op):
            self.kind = "ds"
            self.w = R[0]
            self.r = [x for rr in R[1:] for x in rr]
        elif op.startswith("ds_"):
            self.kind = "ds"
            self.r = [x for rr in R for x in rr]
        elif op.startswith(("s_load", "s_memtime", "s_memrealtime")):
            self.kind = "smem"
            self.w = R[0]
            self.r = [x for rr in R[1:] for x in rr]
        elif op.startswith(("s_cmp", "s_bitcmp")):
            self.kind = "salu"
            self.r = [x for rr in R for x in rr]
        elif op.startswith(("s_waitcnt", "s_nop", "s_barrier", "s_branch", "s_cbranch", "s_endpgm", "s_setprio", "s_sleep")):
            self.kind = "ctl"
        elif op.startswith("s_"):
            self.kind = "salu"
            self.w = list(R[0])
            self.r = [x for rr in R[1:] for x in rr]
            if "saveexec" in op:
                self.w = self.w + regs_of("exec")
        else:
            raise ValueError("unknown op " + text)

    def states(self):
        if self.op == "s_nop":
            return int(self.text.split(";")[0].split()[1]) + 1
        return 1


def need(p, c, c_covered=False):
    n = 0
    pw, cr, cw = set(p.w), set(c.r), set(c.w)
    if p.kind == "valu":
        vw = {x for x in pw if x[0] != "s"}
        sw = {x for x in pw if x[0] == "s"}
        if c.kind == "mfma" and vw & cr:
            n = max(n, 2)
        if c.kind == "valu":
            if ("_dpp" in c.op or c.op.startswith("v_permlane")) and vw & cr:
                n = max(n, 2)
            if c.op.startswith(("v_readlane", "v_readfirstlane")) and vw & cr:
                n = max(n, 1)
            if p.op.startswith(TRANS) and vw & cr:
                n = max(n, 1)
            if ("sdwa" in p.op or "op_sel" in p.mods) and vw & (cr | cw):
                n = max(n, 1)
            if sw & cr:
                n = max(n, 4 if c.op.startswith(("v_readlane", "v_writelane")) else 2)
            if ("s", 126) in sw:
                n = max(n, 5)
            if p.op.startswith("v_dot") and vw & (cr | cw):
                n = max(n, 3)
        if c.kind == "mfma" and ("s", 126) in sw:
            n = max(n, 4)
        if c.kind == "vmem" and sw & cr:
            n = max(n, 5)
        if c.kind in ("salu", "smem") and sw & cr:
            n = max(n, 2)
    if p.kind == "mfma":
        full = {2: 5, 4: 8, 8: 12}[p.passes]
        if c.kind in ("valu", "vmem", "ds") and pw & (cr | cw):
            n = max(n, full)
        if c.kind == "mfma":
            if pw & set(c.ab):
                n = max(n, full)
            if pw & set(c.srcc):
                same = list(p.w) == list(c.srcc) and p.passes == c.passes and p.passes >= 4
                if not same and not (c_covered and p.passes == c.passes):
                    n = max(n, p.passes + 2)
            elif pw & cw and p.passes != c.passes:
                n = max(n, p.passes + 2)
        if c.kind == "valu" and set(p.srcc) & cw:
            n = max(n, p.passes - 1)
    if p.kind == "vmem" and "store" in p.op and ("x4" in p.op or "x3" in p.op):
        if c.kind == "valu" and set(p.r) & cw:
            n = max(n, 2)
    if p.kind == "salu" and ("s", 124) in pw and (c.kind in ("vmem", "ds")):
        n = max(n, 1)
    return n


class Asm:
    def __init__(self):
        self.ins = []
        self.nopad = False
        self.vm = []
        self.lg = []
        self.pads = 0
        self.autowait = False
        self.tag = None

    def raw(self, text):
        self.ins.append(Ins(text))

    def comment(self, text):
        self.ins.append(Ins("; " + text))

    def __call__(self, text):
        for line in text.strip("\n").split("\n"):
            self._one(line.strip())

    def _one(self, text):
        c = Ins(text)
        c.tag = self.tag
        if c.real and self.autowait:
            touched = set(c.r) | set(c.w)
            w = []
            for name, lst in (("vmcnt", self.vm), ("lgkmcnt", self.lg)):
                last = max([i for i, q in enumerate(lst) if q[0] & touched], default=-1)
                if last >= 0:
                    n = len(lst) - 1 - last
                    if name == "lgkmcnt" and any(q[2] == "smem" for q in lst):
                        n = 0
                    w.append(f"{name}({min(n, 15 if name == 'lgkmcnt' else 63)})")
            if w:
                self._one("s_waitcnt " + " ".join(w))
        if c.real:
            dist, lack, cov = 0, 0, False
            for p in reversed(self.ins):
                if not p.real:
                    continue
                k = need(p, c, cov)
                if c.kind == "mfma" and p.kind == "mfma" and c.srcc and list(p.w) == list(c.srcc) and p.passes == c.passes:
                    cov = True
                if k > dist and k - dist > lack:
                    lack, who = k - dist, p
                dist += p.states()
                if dist >= 20:
                    break
            if lack:
                if self.nopad:
                    raise RuntimeError(f"hazard: '{who.text}' -> '{text}' lacks {lack}")
                self.ins.append(Ins(f"s_nop {lack - 1}"))
                self.pads += lack
            touched = set(c.r) | set(c.w)
            for q in self.vm + self.lg:
                if q[0] & touched:
                    raise RuntimeError(f"missing waitcnt: '{q[1]}' -> '{text}'")
            if c.op == "s_waitcnt":
                m = re.search(r"vmcnt\((\d+)\)", text)
                if m:
                    n = int(m.group(1))
                    self.vm = self.vm[len(self.vm) - n:] if n and n < len(self.vm) else ([] if n == 0 else self.vm)
                m = re.search(r"lgkmcnt\((\d+)\)", text)
                if m:
                    n = int(m.group(1))
                    assert n <= 15
                    if n and any(q[2] == "smem" for q in self.lg):
                        raise RuntimeError("counted lgkmcnt with smem outstanding")
                    self.lg = self.lg[len(self.lg) - n:] if n and n < len(self.lg) else ([] if n == 0 else self.lg)
            if c.kind == "vmem":
                self.vm.append((set(c.w), text, "vmem"))
            if c.kind in ("ds", "smem"):
                self.lg.append((set(c.w), text, c.kind))
        self.ins.append(c)

    def wait_vm_for(self, regs):
        regs = set(regs)
        last = max([i for i, q in enumerate(self.vm) if q[0] & regs], default=-1)
        if last >= 0:
            self(f"s_waitcnt vmcnt({len(self.vm) - 1 - last})")

    def text(self):
        out = []
        for i in self.ins:
            out.append(i.text if (i.is_label or i.is_dir) else "    " + i.text)
        return "\n".join(out) + "\n"

    def maxv(self):
        return max(x[1] for i in self.ins for x in i.w + i.r if x[0] == "v")


def size_of(i):
    op, t = i.op, i.text.split(";")[0]
    if i.kind in ("mfma", "vmem", "ds", "smem"):
        return 8
    lit = False
    for tok in re.split(r"[,\s]+", t)[1:]:
        if re.fullmatch(r"-?(0x[0-9a-f]+|\d+)", tok):
            val = int(tok, 0)
            if not -16 <= val <= 64:
                lit = True
    if i.kind == "ctl" or op in ("s_movk_i32",):
        return 4
    if i.kind == "salu":
        return 8 if lit else 4
    if op.endswith(("_e64", "_dpp", "_sdwa")) or op.startswith("v_pk_") or "|" in t:
        return 8
    vop12 = ("v_mov_b32", "v_add_f32", "v_sub_f32", "v_mul_f32", "v_fmac_f32", "v_max_f32", "v_min_f32", "v_exp_f32",
             "v_rcp_f32", "v_add_u32", "v_sub_u32", "v_subrev_u32", "v_and_b32", "v_or_b32", "v_xor_b32", "v_lshlrev_b32",
             "v_lshrrev_b32", "v_mul_u32_u24", "v_min_u32", "v_max_u32", "v_min_i32", "v_max_i32", "v_readfirstlane_b32",
             "v_permlane16_swap_b32", "v_permlane32_swap_b32", "v_cndmask_b32", "v_mov_b64", "v_ashrrev_i32")
    if op.replace("_e32", "") in vop12:
        return 8 if lit else 4
    return 8


def simulate(ins):
    t = pipe = stall = 0
    vfree = 0
    for i in ins:
        if not i.real:
            continue
        if i.kind == "mfma":
            st = max(t, vfree)
            if pipe > st:
                stall += pipe - st
                st = pipe
            n = max(len(i.ab) // 2, 2)
            cost = 12 if i.op.startswith("v_smfmac") else (8 if len(i.ab) >= 8 else 4)
            vfree = st + cost
            pipe = st + 4 * i.passes
            t = st + 4
        elif i.kind == "valu":
            st = max(t, vfree)
            cost = 8 if i.op.startswith(TRANS) or i.op.startswith("v_permlane") else 4
            vfree = t = st + cost
        elif i.kind == "ds":
            t += 20 if "write_b128" in i.op else 8
        elif i.kind == "vmem":
            t += 16
        else:
            t += 4 * i.states()
    return max(t, vfree), stall
```

```python
import sys, struct, math, itertools
from asmlib import Asm, Ins, size_of, simulate

NAME = "standalone__factorization_afm__recsys"
FS = 272
PART = 28 * FS
WS = PART + 5 * 1024
LDS_BYTES = 4 * WS
UB = 41
NT = 21


def f32(x):
    return "0x%08x" % struct.unpack("<I", struct.pack("<f", x))[0]


def v(a, n=1):
    return f"v{a}" if n == 1 else f"v[{a}:{a + n - 1}]"


def a_(a, n=1):
    return f"a{a}" if n == 1 else f"a[{a}:{a + n - 1}]"


def lanemask(fn):
    m = 0
    for l in range(64):
        if fn(l):
            m |= 1 << l
    return m


class Cfg:
    chunks = [7, 7, 7]
    NB = 11
    stamps = False
    diag = None
    D = 4
    D0 = 3
    convU = [35, 36, 40, 3, 10, 18, 28]
    U3 = 24
    E = 33
    uidx = 22
    rate = 3.3
    slotlead = 4
    codepf = True
    comp = 1.0028
    target = 3
    idxflags = "nt"
    gflags = ""
    g3pos = 1
    verbose = True


PAT = dict(R=lambda r: r, R1=lambda r: (r + 1) & 7, R3=lambda r: (r + 3) & 7, H0=lambda r: r & 3,
           H2=lambda r: (r + 2) & 3, B=lambda r: 0, L=lambda r: (r & 3) + 8 * (r >> 2), Y=lambda r: r ^ (r >> 2))
VEC = dict(A0=("R", 0), A1=("R1", 0), A3=("R3", 0), B1a=("H0", 8), B1b=("H2", 8), B2a=("H0", 12), B2b=("H2", 12),
           B0=("R", 8), B1=("R1", 8), B3=("R3", 8), LX=("L", 0), LY=("L", 4),
           C1a=("H0", 16), C1b=("H2", 16), C2a=("H0", 20), C2b=("H2", 20), C0=("R", 16), C1=("R1", 16), C3=("R3", 16),
           I1=("B", 24), I2=("B", 25), MX=("L", 16), MY=("Y", 20))
UNITS = ("A0A1 A1A3 A0A3 B1aA0 B1aA1 B1bA0 B1bA1 B2aA0 B2aA1 B2bA0 B2bA1 B0B1 B1B3 B0B3 LXLY "
         "C1aA0 C1aA1 C1aB0 C1aB1 C1bA0 C1bA1 C1bB0 C1bB1 C2aA0 C2aA1 C2aB0 C2aB1 C0C1 C1C3 C0C3 "
         "C2bA1 C2bB1 C2bA0 C2bB0 I1A0 I2A0 I1B0 I2B0 I1C0 I2C0 MXMY").split()


def split_unit(s):
    for k in range(2, len(s) - 1):
        if s[:k] in VEC and s[k:] in VEC:
            return s[:k], s[k:]
    raise ValueError(s)


PAIRS = [split_unit(s) for s in UNITS]
assert len(PAIRS) == UB
vpos = lambda name, r: VEC[name][1] + PAT[VEC[name][0]](r)
field_of = lambda pos: pos if pos < 26 else pos - 2
_seen = set()
for u_, (x_, y_) in enumerate(PAIRS):
    for r_ in range(8):
        if u_ == UB - 1 and r_ > 4:
            continue
        e_ = frozenset((field_of(vpos(x_, r_)), field_of(vpos(y_, r_))))
        assert len(e_) == 2 and e_ not in _seen
        _seen.add(e_)
assert len(_seen) == 325
VORD = list(dict.fromkeys(x for p in PAIRS for x in p))
FIRST = {x: min(u for u, p in enumerate(PAIRS) if x in p) for x in VORD}
LAST = {x: max(u for u, p in enumerate(PAIRS) if x in p) for x in VORD}
GNEED = {x: max(vpos(x, r) for r in range(8)) // 4 for x in VORD}
GTOUCH = {x: {vpos(x, r) // 4 for r in range(8)} for x in VORD}


def assign_slots(ns, lead):
    occ = {x: {u % UB for u in range(FIRST[x] - lead + 1, LAST[x] + 1)} for x in VORD}
    order = sorted(VORD, key=lambda x: -len(occ[x]))
    used = [set() for _ in range(ns)]
    res = {}

    def rec(i):
        if i == len(order):
            return True
        x = order[i]
        tried_empty = False
        for s in range(ns):
            if not used[s]:
                if tried_empty:
                    continue
                tried_empty = True
            if not used[s] & occ[x]:
                used[s] |= occ[x]
                res[x] = s
                if rec(i + 1):
                    return True
                used[s] -= occ[x]
        return False
    return res if rec(0) else None


def gen(cfg=Cfg):
    NB = cfg.NB
    AD = dict(R=1, R1=2, R3=3, H0=4, H2=5, B=6, L=7, Y=8)
    vWA, vPA, vCH, vIA, vGA, vSIDX, vMASK, vM = 9, 10, 11, 12, 13, 14, 15, 16
    vNM, vL, vACC, vT = [18, 17], 19, 20, [21, 22]
    vTMP = 23
    IDX, IDXN, PH, PLr, Xr = 24, 26, 28, [32, 36, 40], [44, 60]
    BIAS, RR, WP, ALIN, AABS, SEL, CV, TILE = 76, 92, 100, 108, 124, 132, 136, 152
    S0 = TILE + 2 * NB + 2
    NS = (256 - S0) // 8
    SLOT = [S0 + 8 * i for i in range(NS)]
    assert NS >= 9
    slot_of = None
    for lead in range(cfg.slotlead + 4, cfg.slotlead - 1, -1):
        slot_of = assign_slots(NS, lead)
        if slot_of:
            break
    assert slot_of, "no slot assignment"
    sW, sADJ, sK, sWW, sQ, sSC, sOSC, sGC, sCNT, sIO = 28, 29, 30, 31, 46, 47, 48, 49, 52, 53
    sDONE, sSELM = 50, 32
    mf, mh, ml = "v_mfma_f32_32x32x16_bf16", "v_mfma_f32_32x32x16_f16", "v_mfma_f32_16x16x32_f16"
    bi = lambda u: (u & 1) if u < cfg.U3 else 2 if u == cfg.U3 else (u - 1) & 1
    X = lambda n: (Xr + [CV])[bi(n % UB)]
    PL = lambda n: PLr[bi(n % UB)]
    tilereg = lambda T: TILE + 2 * (T % NB)
    assert cfg.U3 - 1 not in cfg.convU and cfg.U3 not in cfg.convU
    vreg = lambda x: SLOT[slot_of[x]]

    def g_addr(t):
        ql, k = (t // 2, t & 1) if t < 6 else (3, 1)
        return f"v_add_u32_dpp {v(vGA)}, {v(IDX + k)}, {v(vCH)} quad_perm:[{ql},{ql},{ql},{ql}] row_mask:0xf bank_mask:0xf"
    g_load = lambda t: f"buffer_load_dwordx4 {a_(4 + 4 * t, 4)}, {v(vGA)}, s[20:23], 0 offen {cfg.gflags}".strip()
    gkey = lambda t: ("a", 4 + 4 * t)
    c_ops = lambda d: [f"v_cvt_pk_f16_f32 {v(d + k)}, {v(d + 2 * k)}, {v(d + 2 * k + 1)}" for k in range(4)]
    c_m = lambda t, d: f"{mf} {v(d, 16)}, {v(SEL, 4)}, {a_(4 + 4 * t, 4)}, 0"
    c_w = lambda t, d: f"ds_write_b128 {v(vWA)}, {v(d, 4)} offset:{4 * t * FS}"
    rd = lambda x, q: f"ds_read_b128 {v(vreg(x) + 4 * q, 4)}, {v(AD[VEC[x][0]])} offset:{VEC[x][1] * FS + 32 * q}"
    idx_load = f"buffer_load_dwordx2 {v(IDXN, 2)}, {v(vIA)}, s[4:7], s{sIO} offen {cfg.idxflags}".strip()
    idx_shift = [f"v_lshlrev_b32@ {v(IDX + k)}, 6, {v(IDXN + k)}" for k in range(2)]

    def Ptext(n, k):
        xa, xb = PAIRS[n % UB]
        d = PL(n) + k if k < 4 else PH + k - 4
        return f"v_pk_mul_f16 {v(d)}, {v(vreg(xa) + k)}, {v(vreg(xb) + k)}"
    Ftext = lambda n, k: f"v_fma_f32 {v(X(n) + k)}, |{v(X(n) + k)}|, {v(RR + k)}, |{v(X(n) + 8 + k)}|"
    M0text = lambda n: f"{mh} {v(X(n), 16)}, {v(WP, 4)}, {v(PL(n), 4)}, {v(BIAS, 16)}"

    def deadline(T):
        for T2 in range(T + 1, T + 2 * NT):
            p = (T2 % NT) % NB
            if p == T % NB or p + 1 == T % NB:
                return 2 * (T2 % NT) + UB * (T2 // NT)
    NBAT = 6
    S = Asm()
    conv_at = {}
    for b in range(NBAT + 1):
        for t, u in enumerate(cfg.convU):
            wrap = t < 4 and u > 20
            conv_at[b * UB + u - (UB if wrap else 0)] = (b, t)
    gseq = lambda b, t: 7 * b + t
    st = dict(credit=0.0, maxdone=0, odd=False, written=max(gseq(*x) for n, x in conv_at.items() if n < 0),
              pend_c=None, g_ready=None, idx_have=0, idx_loaded=1, cur=0)
    st["gnext"] = st["gallow"] = st["written"] + cfg.D + 1
    rq = [(b, x, q) for b in range(NBAT + 1) for x in VORD for q in range(2)]
    issued, at = {}, {}
    freed = {s: True for s in range(NS)}
    sm, maxq = [], []
    for b in range(NBAT):
        U0, T0, nch = b * UB, 0, len(cfg.chunks)
        assert sum(cfg.chunks) == NT
        rdy = lambda T: U0 + min(2 * T + 1, UB - 1) + 2
        for c, sz in enumerate(cfg.chunks):
            Ts = list(range(T0, T0 + sz))
            T0 += sz
            pend = []
            mq = lambda T, text, Tr: maxq.append((rdy(T), 1, text, U0 + deadline(Tr), b))
            for T in Ts:
                if T == NT - 1:
                    mq(T, f"v_add_f32@ {v(tilereg(T))}, {v(tilereg(T))}, {v(vMASK)}", T)
                pend.append(T)
                first = c == 0 and pend[0] == 0
                r_ = [v(tilereg(q)) for q in pend]
                if first and sz & 1:
                    if len(pend) == 3:
                        mq(T, f"v_max3_f32 {v(vM)}, {r_[0]}, {r_[1]}, {r_[2]}", pend[0])
                        pend = []
                elif len(pend) == 2:
                    mq(T, f"v_max_f32@ {v(vM)}, {r_[0]}, {r_[1]}" if first else f"v_max3_f32 {v(vM)}, {r_[0]}, {r_[1]}, {v(vM)}", pend[0])
                    pend = []
            if pend:
                mq(pend[0], f"v_max_f32@ {v(vM)}, {v(tilereg(pend[0]))}, {v(vM)}", pend[0])
            ready = rdy(Ts[-1])
            nm, old = vNM[(nch - 1 - c) & 1], vNM[(nch - c) & 1]
            add = lambda cost, text, T=None, gate=0: sm.append((ready, cost, text, None if T is None else U0 + deadline(T), b, gate))
            add(1, f"v_mul_f32_e64 {v(nm)}, -{v(vM)}, s{sSC}", None, len(maxq))

            def head(T):
                add(1, f"v_fma_f32 {v(vT[T & 1])}, {v(tilereg(T))}, s{sSC}, {v(nm)}", T)
                add(2, f"v_exp_f32@ {v(vT[T & 1])}, {v(vT[T & 1])}")

            def tailops(T):
                t = vT[T & 1]
                if T == 0:
                    add(1, f"v_mul_f32@ {v(vACC)}, {v(t)}, {v(tilereg(T) + 1)}", T)
                    return
                add(1, f"v_fmac_f32@ {v(vACC)}, {v(t)}, {v(tilereg(T) + 1)}", T)
                if T == 1:
                    add(1, f"v_add_f32@ {v(vL)}, {v(vT[0])}, {v(vT[1])}")
                elif T == Ts[0]:
                    add(1, f"v_fma_f32 {v(vL)}, {v(vL)}, {v(old)}, {v(t)}")
                else:
                    add(1, f"v_add_f32@ {v(vL)}, {v(vL)}, {v(t)}")
            if c:
                add(1, f"v_sub_f32@ {v(old)}, {v(nm)}, {v(old)}")
                add(2, f"v_exp_f32@ {v(old)}, {v(old)}")
            head(Ts[0])
            if c:
                add(1, f"v_mul_f32@ {v(vACC)}, {v(vACC)}, {v(old)}")
                rest = Ts
            else:
                head(1)
                tailops(0)
                tailops(1)
                head(2)
                rest = Ts[2:]
            for i, T in enumerate(rest):
                if i + 1 < len(rest):
                    head(rest[i + 1])
                tailops(T)
        add(0, f"ds_write_b96 {v(vPA)}, {v(vNM[0], 3)}")
        add(1, f"v_add_u32 {v(vPA)}, 1024, {v(vPA)}")

    def put(text, b):
        S.tag = b - st["cur"] // UB
        S(text)

    def emit(text, b):
        if "@" in text:
            put(text.replace("@", "_e32" if st["odd"] else "_e64"), b)
            S.ins[-1].flex = text
            st["odd"] = False
        else:
            align()
            put(text, b)

    def small(text):
        S.tag = "ctl"
        S(text)
        st["odd"] = not st["odd"]

    def align():
        if st["odd"]:
            small("s_nop 0")

    def softmax_slots(n, budget, late=0):
        used = cnt = 0
        while used < budget:
            lim = next((s_[5] for s_ in sm if s_[5]), 10 ** 9)
            if maxq and maxq[0][0] <= n and st["maxdone"] < lim:
                it = maxq.pop(0)
                st["maxdone"] += 1
            elif sm and sm[0][0] <= n and sm[0][1] and (sm[0][5] == 0 or st["maxdone"] >= sm[0][5]):
                it = sm.pop(0)
            else:
                break
            assert it[3] is None or n + late <= it[3], f"tile read too late in unit {n}: {it}"
            emit(it[2], it[4])
            used += it[1]
            cnt += 1
        return used, cnt

    def can_read():
        b, x, q = rq[0]
        return gseq(b, GNEED[x]) <= st["written"] and (q == 1 or freed[slot_of[x]])

    def do_read():
        b, x, q = rq.pop(0)
        freed[slot_of[x]] = False
        issued[b, x] = q + 1
        at[b, x] = st["cur"]
        put(rd(x, q), b)

    def urgent(n0):
        return any(n0 + i > b * UB + FIRST[x] - 3 for i, (b, x, q) in enumerate(rq[:10]))

    def hook(nxt_h2):
        if can_read() and urgent(nxt_h2):
            do_read()
            return 1
        if sm and sm[0][1] == 0:
            it = sm.pop(0)
            put(it[2], it[4])
            return 1
        return 0

    def lg_count(n):
        regs = {("v", vreg(x) + k) for x in PAIRS[n % UB] for k in range(8)}
        last = max([i for i, q in enumerate(S.lg) if q[0] & regs], default=-1)
        return [f"lgkmcnt({len(S.lg) - 1 - last})"] if last >= 0 else []

    def vm_count(key):
        last = max([i for i, q in enumerate(S.vm) if key in q[0]], default=-1)
        return [len(S.vm) - 1 - last] if last >= 0 else []
    ready2 = lambda n: all(issued.get((n // UB, x)) == 2 for x in PAIRS[n % UB])
    st["cur"] = -1
    while can_read():
        do_read()
    S("s_waitcnt lgkmcnt(0)")
    S.nopad = True
    cuts, exits, snaps = [], [], []
    for n in range(NBAT * UB):
        b, u = divmod(n, UB)
        st["cur"] = n
        T, par = u >> 1, u & 1
        pb = (n - 1) // UB
        nb = (n + 1) // UB
        if u == 0:
            st["cur"] = n - 1
        put(M0text(n), b)
        st["cur"] = n
        if u == 0:
            cuts.append(len(S.ins))
            snaps.append(dict(written=st["written"] - 7 * b, gnext=st["gnext"] - 7 * b, gallow=st["gallow"] - 7 * b,
                              g_ready=None if st["g_ready"] is None else st["g_ready"] - 7 * b,
                              pend_c=None if st["pend_c"] is None else st["pend_c"] - 7 * b,
                              reads=[(x, q) for x in VORD for q in range(issued.get((b, x), 0))],
                              idx_have=st["idx_have"] - b, idx_loaded=st["idx_loaded"] - b))
        if u:
            hook(n)
        for k in range(4, 8):
            put(Ptext(n, k), b)
        for x in PAIRS[u]:
            if LAST[x] == u:
                freed[slot_of[x]] = True
        put(Ftext(n - 1, 2), pb)
        put(Ftext(n - 1, 3), pb)
        put(f"{mh} {v(X(n), 16)}, {v(WP + 4, 4)}, {v(PH, 4)}, {v(X(n), 16)}", b)
        extra = 0
        assert ready2(n + 1), f"vectors of pair {n + 1} not issued"
        w_ = lg_count(n + 1)
        if w_:
            small("s_waitcnt " + w_[0])
            align()
            extra += 2
        else:
            extra += hook(n)
        for k in range(4, 8):
            put(Ftext(n - 1, k), pb)
        put(Ptext(n + 1, 0), nb)
        put(Ptext(n + 1, 1), nb)
        pu = (n - 1) % UB
        put(f"v_smfmac_f32_16x16x64_bf16 {v(tilereg(pu >> 1), 4)}, {v(AABS + 4 * (pu & 1), 4)}, {v(X(n - 1), 8)}, {v(vSIDX)}", pb)
        conv = conv_at.get(n)
        if u == cfg.E:
            exits.append(len(S.ins))
            small(f"s_sub_u32 s{sCNT}, s{sCNT}, 1")
            small("s_cbranch_scc1 L_tail")
            extra += 2
        elif st["g_ready"] is not None:
            put(g_load(st["g_ready"] % 7), st["g_ready"] // 7)
            st["g_ready"] = None
            extra += 1
        elif u >= cfg.uidx and st["idx_loaded"] < b + 2:
            assert st["idx_have"] == b + 1
            put(idx_load, b + 2)
            st["idx_loaded"] = b + 2
            extra += 1
        elif can_read():
            do_read()
            extra += 1
        vmw = []
        want_g = st["g_ready"] is None and st["gnext"] < st["gallow"] + (1 if conv else 0)
        shift = st["g_ready"] is None and st["gnext"] // 7 > st["idx_have"]
        if conv:
            assert gseq(*conv) < st["gnext"] and gseq(*conv) != st["g_ready"]
            vmw += vm_count(gkey(conv[1]))
        if shift:
            assert st["idx_loaded"] > st["idx_have"]
            vmw += vm_count(("v", IDXN))
        w_ = [f"vmcnt({min(vmw)})"] if vmw else []
        if ready2(n + 2) and all(at[(n + 2) // UB, x] < n for x in PAIRS[(n + 2) % UB]):
            w_ += lg_count(n + 2)
        if w_:
            small("s_waitcnt " + " ".join(w_))
            extra += 1
        st["credit"] += cfg.rate
        cnt = 0
        if shift:
            st["idx_have"] += 1
            for o in idx_shift:
                emit(o, st["idx_have"])
            cnt += 2
        soon = conv or (n + 1) in conv_at
        budget = (0 if cnt or st["pend_c"] is not None else 1) if soon else st["credit"]
        if st["odd"] and budget == 0:
            budget = 1
        acc_ = sum(q_[1] for q_ in maxq if q_[0] <= n)
        for it in sm[:40]:
            if it[0] > n:
                break
            acc_ += it[1]
            if it[3] is not None:
                budget = max(budget, acc_ - 4 * (it[3] - n))
        used, c_ = softmax_slots(n, budget)
        st["credit"] -= used
        cnt += c_
        if st["pend_c"] is not None:
            for o in c_ops(CV):
                emit(o, st["pend_c"] // 7)
            cnt += 4
        if want_g and not conv and not shift:
            emit(g_addr(st["gnext"] % 7), st["gnext"] // 7)
            st["g_ready"] = st["gnext"]
            st["gnext"] += 1
            cnt += 1
        align()
        if extra + cnt < 1:
            small("s_nop 0")
            small("s_nop 0")
        put(f"{ml} {v(tilereg(T), 4)}, {v(ALIN + 8 * par, 4)}, {v(PL(n), 4)}, {v(tilereg(T), 4) if par else '0'}", b)
        if st["pend_c"] is not None:
            gb, gt = divmod(st["pend_c"], 7)
            assert not any(b2 < gb and gt in GTOUCH[x] for b2, x, q in rq), "LDS region still to be read"
            put(c_w(gt, CV), gb)
            st["written"] = st["pend_c"]
            st["pend_c"] = None
        else:
            hook(n + 1)
        put(Ptext(n + 1, 2), nb)
        put(Ptext(n + 1, 3), nb)
        put(f"{ml} {v(tilereg(T), 4)}, {v(ALIN + 8 * par + 4, 4)}, {v(PH, 4)}, {v(tilereg(T), 4)}", b)
        hook(n + 1)
        put(Ftext(n, 0), b)
        put(Ftext(n, 1), b)
        if conv:
            put(c_m(conv[1], CV), conv[0])
            hook(n + 1)
            st["pend_c"] = gseq(*conv)
            st["gallow"] = gseq(*conv) + cfg.D + 1
            k = 6
            if want_g:
                emit(g_addr(st["gnext"] % 7), st["gnext"] // 7)
                st["g_ready"] = st["gnext"]
                st["gnext"] += 1
                k -= 1
            used, c_ = softmax_slots(n, k, 1)
            st["credit"] -= used
        st["credit"] = min(st["credit"], 6.0 if (n + 1) in conv_at else 2.0)
        if u == UB - 1:
            st["credit"] = 0.0
    per = lambda i: S.ins[cuts[i]:cuts[i + 1]]
    assert [x.text for x in per(3)] == [x.text for x in per(4)], "schedule did not become periodic"
    assert snaps[3] == snaps[4]
    BODY, snap, EXIT = per(3), snaps[3], exits[3] - cuts[3]
    assert snap["idx_have"] == 0 and snap["idx_loaded"] == 1 and snap["gnext"] <= 7, snap

    A = Asm()
    WRAW, HRAW, BRAW, PRAW, SEL1, DH, DP = SLOT[0], SLOT[1], SLOT[2], SLOT[3], SLOT[4], SLOT[5], SLOT[7]
    EST, HS, HL, SH = TILE, TILE + 4, TILE + 6, TILE + 7
    DW, DU = Xr

    def smask(reg, m):
        A(f"s_mov_b32 s{reg}, 0x{m & 0xffffffff:08x}")
        A(f"s_mov_b32 s{reg + 1}, 0x{m >> 32:08x}")
    nst = [0]

    def stamp(force=False):
        if cfg.stamps:
            i = nst[0]
            nst[0] += 1
            if cfg.diag and i not in cfg.diag and not force:
                return
            A.raw(f"s_memtime s[{56 + 4 * i}:{57 + 4 * i}]")
            A.raw(f"s_memrealtime s[{58 + 4 * i}:{59 + 4 * i}]")
            if i:
                A("s_waitcnt lgkmcnt(0)")
                A("s_nop 0")
    A("s_cmp_ge_u32 s2, 256")
    A("s_cbranch_scc1 L_end")
    A("s_load_dwordx4 s[4:7], s[0:1], 0")
    A("s_load_dwordx8 s[8:15], s[0:1], 32")
    A("s_load_dwordx2 s[24:25], s[0:1], 64")
    if cfg.stamps:
        A("s_load_dwordx2 s[18:19], s[0:1], 80")
    stamp()
    if cfg.codepf:
        A("s_getpc_b64 s[40:41]")
        A("L_pc:")
        A("s_bfe_u32 s3, s2, 0x20003")
        A("s_lshl_b32 s3, s3, 12")
        A("v_lshl_add_u32 v1, v0, 4, s3")
        A("v_min_u32 v1, L_end-L_pc, v1")
        A("global_load_dword a0, v1, s[40:41]")
    A("v_lshrrev_b32 v1, 6, v0")
    A("v_bfe_u32 v17, v0, 4, 2")
    A(f"v_readfirstlane_b32 s{sW}, v1")
    A("v_and_b32 v18, 3, v0")
    A("v_bfe_u32 v19, v0, 2, 2")
    A("v_mad_u32_u24 v20, v17, 3, v18")
    A("v_lshlrev_b32 v20, 1, v20")
    A("v_and_b32 v21, 1, v17")
    A("v_add_u32 v21, 23, v21")
    smask(40, lanemask(lambda l: (l & 3) == 3))
    A("v_cndmask_b32_e64 v20, v20, v21, s[40:41]")
    A("v_mad_u32_u24 v20, v19, 26, v20")
    A("s_lshl_b32 s3, s2, 2")
    A(f"s_add_u32 s3, s3, s{sW}")
    A("s_mul_i32 s42, s3, 1664")
    A(f"v_lshl_add_u32 {v(vIA)}, v20, 2, s42")
    A(f"s_mov_b32 s{sADJ}, 0")
    A(f"s_mov_b64 s[{sDONE}:{sDONE + 1}], 0")
    A("s_waitcnt lgkmcnt(0)")
    A("s_mov_b32 s20, s6")
    A("s_mov_b32 s21, s7")
    A("L_retry:")
    A(f"global_load_dwordx2 {v(IDX, 2)}, {v(vIA)}, s[4:5] {cfg.idxflags}")
    stamp()
    A("s_mov_b32 s22, 6400000")
    A("s_mov_b32 s23, 0x00020000")
    A(f"v_and_b32 {v(vCH)}, 3, v0")
    A(f"v_lshlrev_b32 {v(vCH)}, 4, {v(vCH)}")
    A("v_bfe_u32 v17, v0, 2, 4")
    A("s_mov_b32 s40, 400000")
    A(f"v_mad_u32_u24 v17, v17, s40, {v(vCH)}")
    A(f"global_load_dwordx4 {v(EST, 4)}, v17, s[20:21]")
    A("v_bfe_u32 v16, v0, 5, 1")
    A("v_and_b32 v17, 19, v0")
    A("v_and_b32 v18, 4, v0")
    A("v_lshl_or_b32 v17, v18, 1, v17")
    A("v_and_b32 v18, 8, v0")
    A("v_lshrrev_b32 v18, 1, v18")
    A("v_or_b32 v17, v17, v18")
    A("v_lshlrev_b32 v18, 4, v16")
    A("v_lshl_or_b32 v19, v17, 6, v18")
    A(f"global_load_dwordx4 {v(WRAW, 4)}, v19, s[8:9]")
    A(f"global_load_dwordx4 {v(WRAW + 4, 4)}, v19, s[8:9] offset:32")
    A("v_lshlrev_b32 v17, 1, v17")
    A(f"v_mov_b32 {v(HL)}, 0")
    A(f"global_load_dwordx4 {v(HRAW, 4)}, v18, s[12:13]")
    A(f"global_load_dwordx4 {v(HRAW + 4, 4)}, v18, s[12:13] offset:32")
    A("v_and_b32 v20, 16, v0")
    A("v_lshl_or_b32 v20, v16, 3, v20")
    A(f"global_load_dwordx4 {v(PRAW, 4)}, v18, s[14:15]")
    A(f"global_load_dwordx4 {v(PRAW + 4, 4)}, v18, s[14:15] offset:32")
    A(f"global_load_dwordx4 {v(BRAW, 4)}, v18, s[10:11]")
    A(f"global_load_dwordx4 {v(BRAW + 4, 4)}, v18, s[10:11] offset:32")
    A(f"global_load_short_d16_hi {v(HL)}, v17, s[12:13]")
    A(f"global_load_dwordx2 {v(HS, 2)}, v20, s[12:13] offset:32")
    A("s_mov_b32 s6, 1703936")
    A("s_mov_b32 s7, 0x00020000")
    A("s_mov_b32 s26, 32768")
    A("s_mov_b32 s27, 0x00020000")
    A(f"s_movk_i32 s{sIO}, 416")
    A(f"s_mov_b32 s{sCNT}, 3")
    A(f"s_mul_i32 s43, s{sW}, {WS}")
    A(f"s_movk_i32 s44, {FS}")
    A("v_and_b32 v17, 15, v0")
    A("v_lshl_add_u32 v17, v17, 4, s43")
    A("v_bfe_u32 v19, v0, 4, 2")
    A(f"v_mad_u32_u24 {v(vWA)}, v19, s44, v17")
    A("v_and_b32 v17, 63, v0")
    A(f"s_add_u32 s45, s43, {PART}")
    A(f"v_lshl_add_u32 {v(vPA)}, v17, 4, s45")
    A(f"v_lshlrev_b32 v17, 2, {v(vCH)}")
    A(f"v_add3_u32 {v(AD['B'])}, v17, v18, s43")
    A("v_bfe_u32 v17, v0, 2, 3")
    mad = lambda p, r: A(f"v_mad_u32_u24 {v(AD[p])}, {r}, s44, {v(AD['B'])}")
    mad("R", "v17")
    A("v_add_u32 v18, 1, v17")
    A("v_and_b32 v18, 7, v18")
    mad("R1", "v18")
    A("v_add_u32 v18, 3, v17")
    A("v_and_b32 v18, 7, v18")
    mad("R3", "v18")
    A("v_and_b32 v18, 3, v17")
    mad("H0", "v18")
    A("v_xor_b32 v19, 2, v18")
    mad("H2", "v19")
    A("v_lshrrev_b32 v19, 2, v17")
    A("v_lshl_add_u32 v18, v19, 3, v18")
    mad("L", "v18")
    A("v_xor_b32 v18, v17, v19")
    mad("Y", "v18")
    A(f"v_and_b32 {v(SH)}, 1, v0")
    A(f"v_lshlrev_b32 {v(SH)}, 4, {v(SH)}")
    A("s_movk_i32 s44, 0x3f80")
    A(f"v_lshlrev_b32_e64 v21, {v(SH)}, s44")
    for R in (4, 5, 6, 7, 0, 1, 2, 3):
        m = lanemask(lambda l: (l >> 5) == ((l >> 2) & 1) and ((l >> 1) & 1) + 2 * ((l >> 3) & 3) == R)
        sm_ = sSELM + 2 * (R & 3)
        smask(sm_, m)
        A(f"v_cndmask_b32_e64 {v(SEL1 + R)}, 0, v21, s[{sm_}:{sm_ + 1}]")
    A(f"v_mov_b32 {v(vSIDX)}, 0xdddd")
    A("v_mov_b32 v21, 0xff800000")
    smask(40, lanemask(lambda l: l >= 20))
    A(f"v_cndmask_b32_e64 {v(vMASK)}, 0, v21, s[40:41]")
    A.wait_vm_for([("v", IDX)])
    stamp()
    for k in range(2):
        A(f"v_lshlrev_b32 {v(IDX + k)}, 6, {v(IDX + k)}")
    gi = [0]

    def gather(upto):
        while gi[0] < upto:
            A(g_addr(gi[0]))
            A(g_load(gi[0]))
            gi[0] += 1
    gather(cfg.D0)

    def delayed(pos):
        if pos == cfg.g3pos:
            A(idx_load)
            gather(cfg.D)
    A.wait_vm_for([("v", HS)])
    stamp()
    delayed(0)
    neg = "neg_lo:[0,1,0] neg_hi:[0,1,0]"
    dpp = lambda c: f"{c} row_mask:0xf bank_mask:0xf"
    A(f"{mf} {v(DW, 16)}, {v(WRAW, 4)}, {v(SEL1, 4)}, 0")
    A(f"v_pk_maximum3_f16 v21, {v(EST)}, {v(EST)}, 0 {neg}")
    A(f"v_pk_maximum3_f16 v22, {v(EST + 1)}, {v(EST + 1)}, 0 {neg}")
    A(f"v_pk_maximum3_f16 v21, {v(EST + 2)}, {v(EST + 2)}, v21 {neg}")
    A(f"v_pk_maximum3_f16 v22, {v(EST + 3)}, {v(EST + 3)}, v22 {neg}")
    A("v_pk_max_u16 v21, v21, v22")
    A("v_max_u32_sdwa v21, v21, v21 dst_sel:DWORD dst_unused:UNUSED_PAD src0_sel:WORD_0 src1_sel:WORD_1")
    A(f"{mf} {v(DW, 16)}, {v(WRAW + 4, 4)}, {v(SEL1 + 4, 4)}, {v(DW, 16)}")
    A("s_mov_b32 s44, 0x80008000")
    A(f"v_max_u32_dpp v21, v21, v21 {dpp('quad_perm:[1,0,3,2]')}")
    A("v_mov_b32 v22, 0x3f803f80")
    A(f"v_and_or_b32 {v(HS)}, {v(HS)}, s44, v22")
    A(f"v_max_u32_dpp v21, v21, v21 {dpp('quad_perm:[2,3,0,1]')}")
    A(f"v_and_or_b32 {v(HS + 1)}, {v(HS + 1)}, s44, v22")
    A("v_add_u32 v21, -1, v21")
    A(f"{mf} {v(DP, 16)}, {v(SEL1, 4)}, {v(PRAW, 4)}, 0")
    ab = []
    for par in range(2):
        for sg in range(2):
            m = lanemask(lambda l: (l & 15) == 8 * par + 4 * sg)
            ab.append([f"s_mov_b32 s40, 0x{m & 0xffffffff:08x}", "s_mov_b32 s41, s40"] +
                      [f"v_cndmask_b32_e64 {v(AABS + 4 * par + 2 * sg + k)}, 0, {v(HS + k)}, s[40:41]" for k in range(2)])
    A("\n".join(ab[0]))
    A(f"v_min_u32_dpp v21, v21, v21 {dpp('row_ror:4')}")
    A("\n".join(ab[1]))
    A(f"v_min_u32_dpp v21, v21, v21 {dpp('row_ror:8')}")
    A(f"{mf} {v(DP, 16)}, {v(SEL1 + 4, 4)}, {v(PRAW + 4, 4)}, {v(DP, 16)}")
    A("v_readlane_b32 s42, v21, 0")
    A("v_readlane_b32 s43, v21, 16")
    A("v_readlane_b32 s44, v21, 32")
    A("v_readlane_b32 s45, v21, 48")
    A("\n".join(ab[2]))
    A(f"{mf} {v(DH, 16)}, {v(SEL1, 4)}, {v(HRAW, 4)}, 0")
    A("\n".join(ab[3]))
    sal = ["s_min_u32 s42, s42, s43", "s_min_u32 s44, s44, s45", "s_min_u32 s44, s44, s42", "s_add_u32 s44, s44, 1",
           "s_bfe_u32 s44, s44, 0x80007", f"s_sub_i32 s{sK}, {127 + cfg.target}, s44", f"s_min_i32 s{sK}, s{sK}, 40",
           f"s_sub_i32 s{sK}, s{sK}, s{sADJ}", f"s_max_i32 s{sK}, s{sK}, -64", f"s_add_i32 s44, s{sK}, 127", "s_lshl_b32 s44, s44, 7"]
    A("\n".join(sal))
    rest_m = [
        f"{mf} {v(DH, 16)}, {v(SEL1 + 4, 4)}, {v(HRAW + 4, 4)}, {v(DH, 16)}",
        f"{mf} {v(BIAS, 16)}, {v(SEL1, 4)}, {v(BRAW, 4)}, 0",
        f"{mf} {v(BIAS, 16)}, {v(SEL1 + 4, 4)}, {v(BRAW + 4, 4)}, {v(BIAS, 16)}",
        f"{mf} {v(DU, 16)}, {v(WRAW, 4)}, {v(HRAW, 4)}, 0",
        f"{mf} {v(DU, 16)}, {v(WRAW + 4, 4)}, {v(HRAW + 4, 4)}, {v(DU, 16)}",
    ]
    A(rest_m.pop(0))
    A(f"v_lshlrev_b32_e64 v21, {v(SH)}, s44")
    for R in range(4):
        A(f"v_cndmask_b32_e64 {v(SEL + R)}, 0, v21, s[{sSELM + 2 * R}:{sSELM + 2 * R + 1}]")
    A(f"v_max_f32_e64 v17, |{v(DW)}|, |{v(DW + 1)}|")
    A(rest_m.pop(0))
    for k in range(1, 8):
        A(f"v_max3_f32 v17, |{v(DW + 2 * k)}|, |{v(DW + 2 * k + 1)}|, v17")
        if k == 6:
            A(rest_m.pop(0))
    A(f"v_mul_f32_e64 v17, v17, |{v(HL)}|")
    fill = [f"v_max_f32_e64 v18, |{v(DP)}|, |{v(DP + 1)}|"]
    fill += [f"v_max3_f32 v18, |{v(DP + 2 * k)}|, |{v(DP + 2 * k + 1)}|, v18" for k in range(1, 8)]
    fill += [f"v_xor_b32 {v(RR + k)}, {v(DH + k)}, {v(DH + 8 + k)}" for k in range(8)]

    def filler(n=2):
        for _ in range(n):
            if fill:
                A(fill.pop(0))
    for i, ctl in enumerate(("quad_perm:[1,0,3,2]", "quad_perm:[2,3,0,1]", "row_half_mirror", "row_mirror")):
        filler()
        A(f"v_max_f32_dpp v17, v17, v17 {dpp(ctl)}")
        if i & 1:
            A(rest_m.pop(0))
    assert not rest_m
    A("v_readlane_b32 s40, v18, 0")
    A("v_readlane_b32 s41, v18, 32")
    for i in range(4):
        A(f"v_readlane_b32 s{42 + i}, v17, {16 * i}")
    filler(16)
    delayed(1)
    A(f"s_max_u32 s{sQ}, s40, s41")
    A("s_max_u32 s42, s42, s43")
    A("s_max_u32 s44, s44, s45")
    A(f"s_max_u32 s{sWW}, s42, s44")
    A(f"s_lshr_b32 s{sQ}, s{sQ}, 23")
    A(f"s_sub_i32 s{sQ}, 141, s{sQ}")
    A(f"s_min_i32 s{sQ}, s{sQ}, 40")
    A(f"s_lshl_b32 s44, s{sQ}, 23")
    A("s_add_u32 s44, s44, 0x3f800000")
    A(f"s_lshr_b32 s{sWW}, s{sWW}, 23")
    A(f"s_sub_i32 s{sWW}, 136, s{sWW}")
    A(f"s_min_i32 s{sWW}, s{sWW}, 40")
    A(f"s_lshl_b32 s45, s{sWW}, 23")
    A(f"s_add_u32 s{sGC}, s45, {f32(0.5 * math.log2(math.e) * cfg.comp)}")
    A(f"s_add_u32 s45, s45, {f32(0.5 * math.log2(math.e))}")
    A(f"v_mul_f32_e64 v17, s{sGC}, |{v(HL)}|")
    A("s_mov_b32 s40, 0xaaaaaaaa")
    A("s_mov_b32 s41, s40")
    A("v_mov_b32 v18, s45")
    A("v_mov_b32 v19, s44")
    A("v_cndmask_b32_e64 v18, v18, v19, s[40:41]")
    A(f"s_lshl_b32 s44, s{sK}, 1")
    A(f"v_mov_b32 v20, s{sGC}")
    A("v_ldexp_f32 v20, v20, s44")
    A(f"v_mov_b32 v19, v18")
    A(f"v_mov_b32 v16, v17")
    for k in range(16):
        A(f"v_cndmask_b32_e64 {v(DU + k)}, {v(DU + k)}, {v(DP + k)}, s[40:41]")
    for k in range(16):
        A(f"v_mul_f32_e64 {v(BIAS + k)}, {v(BIAS + k)}, |{v(DH + k)}|")
    A("v_mov_b32 v21, v20")
    for k in range(0, 16, 2):
        A(f"v_pk_mul_f32 {v(DW + k, 2)}, {v(DW + k, 2)}, v[16:17]")
        A(f"v_pk_mul_f32 {v(DU + k, 2)}, {v(DU + k, 2)}, v[18:19]")
        A(f"v_pk_mul_f32 {v(BIAS + k, 2)}, {v(BIAS + k, 2)}, v[20:21]")
    A(f"s_add_i32 s45, s44, s{sWW}")
    A("s_sub_i32 s45, 127, s45")
    A("s_min_i32 s45, s45, 255")
    A(f"s_lshl_b32 s{sSC}, s45, 23")
    A(f"s_add_i32 s45, s44, s{sQ}")
    A("s_sub_i32 s45, 127, s45")
    A("s_min_i32 s45, s45, 255")
    A(f"s_lshl_b32 s{sOSC}, s45, 23")
    for par in range(2):
        m = lanemask(lambda l: ((l >> 3) & 1) == par and not (l & 2) and ((l >> 2) & 1) == ((l >> 4) & 1))
        assert m >> 32 == m & 0xffffffff
        A(f"s_mov_b32 s{40 + 2 * par}, 0x{m >> 32:08x}")
        A(f"s_mov_b32 s{41 + 2 * par}, s{40 + 2 * par}")
    A("s_brev_b32 s44, 1")
    for k in range(8):
        A(f"v_cvt_pk_f16_f32 {v(DU + k)}, {v(DU + 2 * k)}, {v(DU + 2 * k + 1)}")
        A(f"v_cvt_pk_f16_f32 {v(WP + k)}, {v(DW + 2 * k)}, {v(DW + 2 * k + 1)}")
        A(f"v_cndmask_b32_e64 {v(ALIN + k)}, 0, {v(DU + k)}, s[40:41]")
        A(f"v_cndmask_b32_e64 {v(ALIN + 8 + k)}, 0, {v(DU + k)}, s[42:43]")
        A(f"v_and_or_b32 {v(RR + k)}, {v(RR + k)}, s44, 1.0")
    delayed(2)
    A(f"s_movk_i32 s{sIO}, 832")
    stamp()
    nw = snap["written"] + 1
    assert nw <= 3
    glast = snap["gnext"] - (snap["g_ready"] is not None)
    win = [Xr[0], Xr[1], CV]
    reads = list(snap["reads"])
    A.autowait = True
    for t in range(nw):
        A(c_m(t, win[t]))
        if t == 0:
            stamp()
        gather(min(gi[0] + 1, glast))
    for t in range(nw):
        A("\n".join(c_ops(win[t])))
        A(c_w(t, win[t]))
        while reads and GNEED[reads[0][0]] <= t:
            A(rd(*reads.pop(0)))
    assert not reads
    if snap["pend_c"] is not None:
        A(c_m(snap["pend_c"], CV))
    gather(glast)
    if snap["g_ready"] is not None:
        A(g_addr(snap["g_ready"]))
    for k in range(4):
        A(Ptext(0, k))
    A("s_waitcnt lgkmcnt(0)")
    A.autowait = False
    stamp()
    A(".p2align 3")
    A(M0text(0))
    pro_end = len(A.ins)
    A("L_loop:")
    loop_end = [f"s_addk_i32 s{sIO}, 416", "s_branch L_loop"]
    A.nopad = True
    marks = []
    for it in range(4):
        marks.append(len(A.ins))
        for i, x in enumerate(BODY):
            if it == 3 and i == EXIT + 2:
                break
            A(x.text) if x.real else A.raw(x.text)
        if it < 3:
            A("\n".join(loop_end))
    marks.append(len(A.ins))
    A.nopad = False
    A.autowait = True
    A("L_tail:")
    rest = [x for x in BODY[EXIT + 2:] if x.tag in (0, -1) or not x.real] + [x for x in BODY if x.tag == -1]
    assert rest[-1].text.startswith("v_add_u32") and rest[-2].text.startswith("ds_write_b96")
    rest.pop()
    for x in rest:
        if not x.real:
            A.raw(x.text)
            continue
        n0 = len(A.ins)
        A(x.flex.replace("@", "_e64") if hasattr(x, "flex") else x.text)
        if (len(A.ins) - n0 - 1) & 1:
            A.ins.insert(len(A.ins) - 1, Ins("s_nop 0"))
    main_trace = A.ins[pro_end:]
    stamp()
    A("v_and_b32 v1, 48, v0")
    A("v_lshlrev_b32 v1, 6, v1")
    A("v_and_b32 v2, 12, v0")
    A("v_lshl_add_u32 v1, v2, 2, v1")
    A(f"v_lshl_add_u32 v1, {v(vCH)}, 2, v1")
    A(f"s_mul_i32 s43, s{sW}, {WS}")
    A("v_add_u32 v1, s43, v1")
    for j in range(4):
        A(f"ds_read_b96 {v(28 + 4 * j, 3)}, v1 offset:{PART + 1024 + 256 * j}")
    A("v_bfe_u32 v1, v0, 2, 4")
    A("s_lshl_b32 s43, s3, 5")
    A("v_lshl_add_u32 v1, v1, 1, s43")
    A("s_movk_i32 s44, 0x1f8")
    A("s_mov_b32 s40, 0x11111111")
    A("s_mov_b32 s41, s40")
    A(f"s_andn2_b64 s[40:41], s[40:41], s[{sDONE}:{sDONE + 1}]")
    A(f"s_cmp_le_i32 s{sK}, -64")
    A("s_cselect_b64 s[42:43], -1, 0")
    A("v_min3_f32 v2, v28, v32, v36")
    A("v_min_f32 v2, v2, v40")
    A(f"v_min_f32_dpp v2, v2, v2 {dpp('quad_perm:[1,0,3,2]')}")
    A(f"v_min_f32_dpp v2, v2, v2 {dpp('quad_perm:[2,3,0,1]')}")
    for j in range(4):
        A(f"v_sub_f32 {v(28 + 4 * j)}, v2, {v(28 + 4 * j)}")
    for j in range(4):
        A(f"v_exp_f32 {v(28 + 4 * j)}, {v(28 + 4 * j)}")
    A("v_mul_f32 v2, v28, v29")
    A("v_mul_f32 v3, v28, v30")
    for j in range(1, 4):
        A(f"v_fmac_f32 v2, {v(28 + 4 * j)}, {v(29 + 4 * j)}")
        A(f"v_fmac_f32 v3, {v(28 + 4 * j)}, {v(30 + 4 * j)}")
    for qp in ("[1,0,3,2]", "[2,3,0,1]"):
        A(f"v_add_f32_dpp v2, v2, v2 {dpp('quad_perm:' + qp)}")
        A(f"v_add_f32_dpp v3, v3, v3 {dpp('quad_perm:' + qp)}")
    A("v_rcp_f32 v2, v2")
    A(f"v_mul_f32 v3, s{sOSC}, v3")
    A("v_mul_f32 v2, v2, v3")
    A("v_cmp_class_f32_e64 vcc, v2, s44")
    A("v_cvt_pk_bf16_f32 v2, v2, v2")
    A("s_or_b64 s[42:43], s[42:43], vcc")
    A("s_and_b64 exec, s[40:41], s[42:43]")
    A("s_cbranch_execz L_nostore")
    A("buffer_store_short v2, v1, s[24:27], 0 offen")
    A("L_nostore:")
    A(f"s_or_b64 s[{sDONE}:{sDONE + 1}], s[{sDONE}:{sDONE + 1}], exec")
    A("s_mov_b64 exec, -1")
    A("s_andn2_b64 s[40:41], s[40:41], s[42:43]")
    A("s_cbranch_scc0 " + ("L_fin" if cfg.stamps else "L_end"))
    A(f"s_add_i32 s{sADJ}, s{sADJ}, 4")
    A("s_waitcnt vmcnt(0)")
    A("s_branch L_retry")
    if cfg.stamps:
        A("L_fin:")
        A("s_waitcnt vmcnt(0)")
        stamp(True)
        if cfg.diag:
            i_, j_ = cfg.diag
            A(f"s_sub_u32 s44, s{58 + 4 * j_}, s{58 + 4 * i_}")
            A("s_lshl_b32 s44, s44, 3")
            A("s_min_u32 s44, s44, 30000")
            A("s_mov_b32 s45, 200000")
            A("L_spin:")
            A("s_memrealtime s[42:43]")
            A("s_waitcnt lgkmcnt(0)")
            A(f"s_sub_u32 s42, s42, s{58 + 4 * (nst[0] - 1)}")
            A("s_cmp_ge_u32 s42, s44")
            A("s_cbranch_scc1 L_end")
            A("s_sub_u32 s45, s45, 1")
            A("s_cmp_lg_u32 s45, 0")
            A("s_cbranch_scc1 L_spin")
        else:
            A("s_mov_b64 exec, 1")
            A("s_lshl_b32 s3, s3, 7")
            A("v_mov_b32 v4, s3")
            for i in range(nst[0]):
                A(f"v_mov_b32 v2, s{56 + 4 * i}")
                A(f"v_mov_b32 v3, s{58 + 4 * i}")
                A(f"global_store_dwordx2 v4, v[2:3], s[18:19] offset:{8 * i}")
    A("L_end:")
    A("s_endpgm")
    del A.ins[marks[1]:marks[4]]
    cyc, stall = simulate(main_trace)
    bc, bs = simulate(BODY)
    kinds = {}
    for i in BODY:
        if i.real:
            kinds[i.kind] = kinds.get(i.kind, 0) + 1
    if cfg.verbose:
        print(f"main model {cyc} (stall {stall}); body {bc} ({bc / UB:.1f}/unit, stall {bs}) {kinds}; slots {NS} lead {lead}; snap {snap}; prologue model {simulate(A.ins[:pro_end])[0]}")
    A.model = cyc
    return A


HEAD = """; @launch grid=(256,1,1) block=(256,1,1) lds={lds}
.amdgcn_target "amdgcn-amd-amdhsa--gfx950"
.text
.globl {n}_kernel
.p2align 8
.type {n}_kernel,@function
{n}_kernel:
"""
TAIL = """.section .rodata,"a"
.p2align 6
.amdhsa_kernel {n}_kernel
  .amdhsa_next_free_vgpr 288
  .amdhsa_next_free_sgpr 96
  .amdhsa_accum_offset 256
  .amdhsa_group_segment_fixed_size 0
  .amdhsa_kernarg_size 88
  .amdhsa_user_sgpr_count 2
  .amdhsa_user_sgpr_kernarg_segment_ptr 1
  .amdhsa_system_sgpr_workgroup_id_x 1
.end_amdhsa_kernel
"""

if __name__ == "__main__":
    out = sys.argv[1]
    for kv in sys.argv[2:]:
        k, val = kv.split("=", 1)
        assert hasattr(Cfg, k), k
        setattr(Cfg, k, eval(val))
    A = gen(Cfg)
    open(out, "w").write(HEAD.format(n=NAME, lds=LDS_BYTES) + A.text() + TAIL.format(n=NAME))
    print("instructions:", sum(i.real for i in A.ins), "bytes:", sum(size_of(i) for i in A.ins if i.real), "pads:", A.pads, "max vgpr:", A.maxv(), "lds:", LDS_BYTES)
```

```python
import sys, math
from asmlib import Asm, Ins, size_of, simulate
from gen3 import (NAME, f32, v, lanemask, PAT, VEC, split_unit, vpos, field_of)

FS = 272
WS = 28 * FS
CONST = 8 * WS
LDS_BYTES = CONST + 12 * 1024 + 16
UB, NT = 41, 21
NP = 2 * UB


class Cfg:
    units = ("A0A1 A1A3 A0A3 B1aA0 B1aA1 B1bA0 B1bA1 B2aA0 B2aA1 B2bA0 B2bA1 B0B1 B1B3 B0B3 LXLY "
             "C1aA0 C1aA1 C1aB0 C1aB1 C1bA0 C1bA1 C1bB0 C1bB1 C2aA0 C2aA1 C2aB0 C2aB1 C0C1 C1C3 C0C3 "
             "C2bA1 C2bB1 C2bA0 C2bB0 I1A0 I2A0 I1B0 I2B0 I1C0 I2C0 MXMY")
    chunks = [[7, 7, 7], [7, 7, 7]]
    NB = 11
    stamps = False
    diag = None
    diagrole = None
    D = 4
    D0 = 3
    convU = [-1, -1, -1, 3, 10, 17, 27, 33, 35, 38, 42, 50, 58, 68]
    rate = 3.3
    prio = {0: 3, 50: 2, 72: 1, 81: 0}
    codepf = True
    comp = 1.0028
    target = 3
    idxflags = "nt"
    gflags = ""
    verbose = True
    urg = 3


def plan(cfg):
    units = cfg.units.split()
    pairs = [split_unit(s) for s in units]
    seen = set()
    for u, (x, y) in enumerate(pairs):
        for r in range(8):
            if units[u] == "MXMY" and r > 4:
                continue
            e = frozenset((field_of(vpos(x, r)), field_of(vpos(y, r))))
            assert len(e) == 2 and e not in seen
            seen.add(e)
    assert len(seen) == 325 and len(pairs) == UB and units[-1] == "MXMY"
    return units, pairs


def gen_role(cfg, role):
    UNITS, PAIRS = plan(cfg)
    VORD = list(dict.fromkeys(x for p in PAIRS for x in p))
    FIRST = {x: min(u for u, p in enumerate(PAIRS) if x in p) for x in VORD}
    LAST = {x: max(u for u, p in enumerate(PAIRS) if x in p) for x in VORD}
    GNEED = {x: max(vpos(x, r) for r in range(8)) // 4 for x in VORD}
    GTOUCH = {x: {vpos(x, r) // 4 for r in range(8)} for x in VORD}
    NB, D = cfg.NB, cfg.D
    AD = dict(R=1, R1=2, R3=3, H0=4, H2=5, B=6, L=7, Y=8)
    vWA, vCH, vGA, vSIDX, vMASK, vM, vT, vIA = 9, 10, 11, 12, 13, 14, [15, 16], 24
    vNM, vL, vACC = [[18, 17], [21, 17]], [19, 22], [20, 23]
    IDX, PH, PLr, Xr = 26, 30, [34, 38], [42, 58]
    BIAS, RR, WP, ALIN, AABS, SEL, CV, TILE = 74, 90, 98, 106, 122, 130, 134, 150
    STG = TILE + 2 * NB + 2
    S0 = STG + 4 * D
    NS = (256 - S0) // 8
    SLOT = [S0 + 8 * i for i in range(NS)]
    assert NS >= 8
    sW, sK, sWW, sQ, sSC, sOSC, sGC = 28, 30, 31, 46, 47, 48, 49
    sDONE, sSELM = 50, 32
    mf, mh, ml = "v_mfma_f32_32x32x16_bf16", "v_mfma_f32_32x32x16_f16", "v_mfma_f32_16x16x32_f16"
    X = lambda n: Xr[n & 1]
    PL = lambda n: PLr[n & 1]
    tileof = lambda n: (n // UB) * NT + (n % UB >> 1)
    tilereg = lambda T: TILE + 2 * (T % NB)
    tfirst = lambda T: (T // NT) * UB + 2 * (T % NT)
    deadline = lambda T: tfirst(T + NB - 1 if T % NB else T + NB)
    A = Asm()
    segs = []
    on = [True]

    class Gate:
        def __call__(self, t):
            if on[0]:
                A(t)
    G = Gate()

    def seg(r):
        on[0] = r == "both" or role in r.split() or (r == "B" and role != "A")
        segs.append((r, len(A.ins)))

    def smask(reg, m):
        G(f"s_mov_b32 s{reg}, 0x{m & 0xffffffff:08x}")
        G(f"s_mov_b32 s{reg + 1}, " + (f"s{reg}" if m >> 32 == m & 0xffffffff else f"0x{m >> 32:08x}"))
    nst = [0]

    def stamp(wait=False, force=False):
        if cfg.stamps:
            i = nst[0]
            nst[0] += 1
            if cfg.diag and i not in cfg.diag and not force:
                return
            A.raw(f"s_memtime s[{56 + 4 * i}:{57 + 4 * i}]")
            A.raw(f"s_memrealtime s[{58 + 4 * i}:{59 + 4 * i}]")
            if wait:
                A("s_waitcnt lgkmcnt(0)")
                A("s_nop 0")

    def waitvm(key):
        if on[0]:
            A.wait_vm_for([key])

    def g_addr(g):
        b, t = divmod(g, 7)
        ql, k = (t // 2, t & 1) if t < 6 else (3, 1)
        return f"v_add_u32_dpp {v(vGA)}, {v(IDX + 2 * b + k)}, {v(vCH)} quad_perm:[{ql},{ql},{ql},{ql}] row_mask:0xf bank_mask:0xf"
    greg = lambda g: STG + 4 * (g % D)
    g_load = lambda g: f"buffer_load_dwordx4 {v(greg(g), 4)}, {v(vGA)}, s[20:23], 0 offen {cfg.gflags}".strip()
    c_ops = lambda d: [f"v_cvt_pk_f16_f32 {v(d + k)}, {v(d + 2 * k)}, {v(d + 2 * k + 1)}" for k in range(4)]
    c_m = lambda g, d: f"{mf} {v(d, 16)}, {v(SEL, 4)}, {v(greg(g), 4)}, 0"
    c_w = lambda g, d: f"ds_write_b128 {v(vWA)}, {v(d, 4)} offset:{4 * (g % 7) * FS}"
    dpp = lambda c: f"{c} row_mask:0xf bank_mask:0xf"

    def first_gathers():
        for g in range(D):
            if g == cfg.D0:
                G(f"global_load_dwordx2 {v(IDX + 2, 2)}, {v(vIA)}, s[4:5] offset:416 {cfg.idxflags}")
            G(g_addr(g))
            G(g_load(g))
        if D == cfg.D0:
            G(f"global_load_dwordx2 {v(IDX + 2, 2)}, {v(vIA)}, s[4:5] offset:416 {cfg.idxflags}")

    seg("both")
    G("s_cmp_ge_u32 s2, 256")
    G("s_cbranch_scc1 L_end")
    G("s_load_dwordx4 s[4:7], s[0:1], 0")
    G("s_load_dwordx8 s[8:15], s[0:1], 32")
    G("s_load_dwordx2 s[24:25], s[0:1], 64")
    if cfg.stamps:
        G("s_load_dwordx2 s[18:19], s[0:1], 80")
    stamp()
    if cfg.codepf:
        G("s_getpc_b64 s[40:41]")
        G("L_pc:")
        G("s_bfe_u32 s3, s2, 0x20003")
        G("s_mul_i32 s3, s3, 6144")
        G("v_mad_u32_u24 v1, v0, 12, s3")
        G("v_min_u32 v1, L_end-L_pc, v1")
        G("global_load_dword v25, v1, s[40:41]")
    G("v_lshrrev_b32 v1, 6, v0")
    G("v_bfe_u32 v17, v0, 4, 2")
    G(f"v_readfirstlane_b32 s{sW}, v1")
    G("v_and_b32 v18, 3, v0")
    G("v_bfe_u32 v19, v0, 2, 2")
    G("v_mad_u32_u24 v20, v17, 3, v18")
    G("v_lshlrev_b32 v20, 1, v20")
    G("v_and_b32 v21, 1, v17")
    G("v_add_u32 v21, 23, v21")
    smask(40, lanemask(lambda l: (l & 3) == 3))
    G("v_cndmask_b32_e64 v20, v20, v21, s[40:41]")
    G("v_mad_u32_u24 v20, v19, 26, v20")
    G("s_lshl_b32 s3, s2, 3")
    G(f"s_add_u32 s3, s3, s{sW}")
    G("s_mul_i32 s42, s3, 832")
    G(f"v_lshl_add_u32 {v(vIA)}, v20, 2, s42")
    G(f"v_lshlrev_b32 {v(vCH)}, 4, v18")
    G("v_bfe_u32 v16, v0, 5, 1")
    G("v_lshlrev_b32 v18, 4, v16")
    G(f"s_cmp_ge_u32 s{sW}, 4")
    G("s_cbranch_scc1 L_b1")
    idx0 = f"global_load_dwordx2 {v(IDX, 2)}, {v(vIA)}, s[4:5] {cfg.idxflags}"
    idx1 = f"global_load_dwordx2 {v(IDX + 2, 2)}, {v(vIA)}, s[4:5] offset:416 {cfg.idxflags}"
    seg("A")
    G("s_waitcnt lgkmcnt(0)")
    G(idx0)
    G("s_branch L_c1")
    seg("B")
    G("L_b1:")
    XRAW, HRAW, SEL1 = SLOT[0], SLOT[1], SLOT[2]
    HS, HL, SH = TILE + 4, TILE + 6, TILE + 7
    D0_, D1_ = Xr
    G("v_and_b32 v17, 19, v0")
    G("v_and_b32 v19, 4, v0")
    G("v_lshl_or_b32 v17, v19, 1, v17")
    G("v_bfe_u32 v19, v0, 3, 1")
    G("v_lshl_or_b32 v17, v19, 2, v17")
    G("v_bfe_u32 v21, v0, 2, 4")
    G(f"s_cmp_eq_u32 s{sW}, 4")
    G("s_cselect_b32 s42, 64, 0")
    G(f"s_cmp_eq_u32 s{sW}, 6")
    G("s_cselect_b32 s42, 400000, s42")
    G("s_cselect_b64 s[40:41], -1, 0")
    G("v_cndmask_b32_e64 v19, v17, v21, s[40:41]")
    G(f"v_cndmask_b32_e64 v21, v18, {v(vCH)}, s[40:41]")
    G("v_mad_u32_u24 v19, v19, s42, v21")
    G("s_waitcnt lgkmcnt(0)")
    G("s_cselect_b64 s[8:9], s[6:7], s[8:9]")
    G(f"s_cmp_eq_u32 s{sW}, 7")
    G("s_cselect_b64 s[10:11], s[14:15], s[10:11]")
    G(f"s_bitcmp1_b32 s{sW}, 0")
    G("s_cselect_b64 s[8:9], s[10:11], s[8:9]")
    G(f"s_bitcmp1_b32 s{sW}, 1")
    G(f"global_load_dwordx4 {v(XRAW, 4)}, v19, s[8:9]")
    G(f"global_load_dwordx4 {v(XRAW + 4, 4)}, v19, s[8:9] offset:32")
    G("s_cbranch_scc1 L_b1b")
    seg("B0 B1")
    G("v_lshlrev_b32 v17, 1, v17")
    G(f"v_mov_b32 {v(HL)}, 0")
    G(f"global_load_short_d16_hi {v(HL)}, v17, s[12:13]")
    G(f"global_load_dwordx4 {v(HRAW, 4)}, v18, s[12:13]")
    G(f"global_load_dwordx4 {v(HRAW + 4, 4)}, v18, s[12:13] offset:32")
    G("s_branch L_c1")
    seg("B2 B3")
    G("L_b1b:")
    G("v_and_b32 v20, 16, v0")
    G("v_lshl_or_b32 v20, v16, 3, v20")
    G(f"global_load_dwordx2 {v(HS, 2)}, v20, s[12:13] offset:32")
    seg("both")
    G("L_c1:")
    stamp()
    G("s_mov_b32 s20, s6")
    G("s_mov_b32 s21, s7")
    G("s_mov_b32 s22, 6400000")
    G("s_mov_b32 s23, 0x00020000")
    G("s_mov_b32 s26, 32768")
    G("s_mov_b32 s27, 0x00020000")
    G(f"s_mov_b64 s[{sDONE}:{sDONE + 1}], 0")
    G(f"s_mul_i32 s43, s{sW}, {WS}")
    G(f"s_movk_i32 s44, {FS}")
    G("v_and_b32 v17, 15, v0")
    G("v_lshl_add_u32 v17, v17, 4, s43")
    G("v_bfe_u32 v19, v0, 4, 2")
    G(f"v_mad_u32_u24 {v(vWA)}, v19, s44, v17")
    G(f"v_lshlrev_b32 v17, 2, {v(vCH)}")
    G(f"v_add3_u32 {v(AD['B'])}, v17, v18, s43")
    G("v_bfe_u32 v17, v0, 2, 3")
    mad = lambda p, r: G(f"v_mad_u32_u24 {v(AD[p])}, {r}, s44, {v(AD['B'])}")
    mad("R", "v17")
    G("v_add_u32 v18, 1, v17")
    G("v_and_b32 v18, 7, v18")
    mad("R1", "v18")
    G("v_add_u32 v18, 3, v17")
    G("v_and_b32 v18, 7, v18")
    mad("R3", "v18")
    G("v_and_b32 v18, 3, v17")
    mad("H0", "v18")
    G("v_xor_b32 v19, 2, v18")
    mad("H2", "v19")
    G("v_lshrrev_b32 v19, 2, v17")
    G("v_lshl_add_u32 v18, v19, 3, v18")
    mad("L", "v18")
    G("v_xor_b32 v18, v17, v19")
    mad("Y", "v18")
    G(f"v_mov_b32 {v(vSIDX)}, 0xdddd")
    G("v_mov_b32 v21, 0xff800000")
    smask(40, lanemask(lambda l: l >= 20))
    G(f"v_cndmask_b32_e64 {v(vMASK)}, 0, v21, s[40:41]")
    G("v_and_b32 v23, 63, v0")
    G("v_lshlrev_b32 v23, 4, v23")
    G(f"v_add_u32 v23, {CONST}, v23")
    G("v_xor_b32 v22, 128, v23")
    G(f"v_mov_b32 v15, {CONST + 12 * 1024}")
    assert CONST % 256 == 0
    G(f"s_cmp_ge_u32 s{sW}, 4")
    G("s_cbranch_scc1 L_b2")
    seg("A")
    waitvm(("v", IDX))
    if role == "A":
        stamp()
    for k in range(2):
        G(f"v_lshlrev_b32 {v(IDX + k)}, 6, {v(IDX + k)}")
    for g in range(cfg.D0):
        G(g_addr(g))
        G(g_load(g))
    G("s_branch L_bar")
    seg("B")
    G("L_b2:")
    G(f"v_and_b32 {v(SH)}, 1, v0")
    G(f"v_lshlrev_b32 {v(SH)}, 4, {v(SH)}")
    G("s_movk_i32 s44, 0x3f80")
    G(f"v_lshlrev_b32_e64 v21, {v(SH)}, s44")
    for R in (4, 5, 6, 7, 0, 1, 2, 3):
        m = lanemask(lambda l: (l >> 5) == ((l >> 2) & 1) and ((l >> 1) & 1) + 2 * ((l >> 3) & 3) == R)
        sm_ = sSELM + 2 * (R & 3)
        smask(sm_, m)
        G(f"v_cndmask_b32_e64 {v(SEL1 + R)}, 0, v21, s[{sm_}:{sm_ + 1}]")
    smask(52, lanemask(lambda l: not (l & 10) and ((l >> 2) & 1) == ((l >> 4) & 1)))
    G(f"s_cmp_eq_u32 s{sW}, 5")
    G("s_cbranch_scc1 L_p1")
    G(f"s_cmp_eq_u32 s{sW}, 6")
    G("s_cbranch_scc1 L_p2")
    G(f"s_cmp_eq_u32 s{sW}, 7")
    G("s_cbranch_scc1 L_p3")
    A.autowait = True
    lo = "op_sel:[0,0] op_sel_hi:[1,0]"
    pub = lambda i, r: G(f"ds_write_b128 v23, {v(r, 4)} offset:{1024 * i}")
    half_log2e = 0.5 * math.log2(math.e)

    def absmax(d, src):
        G(f"v_max_f32_e64 {d}, |{v(src)}|, |{v(src + 1)}|")
        for k in range(1, 8):
            G(f"v_max3_f32 {d}, |{v(src + 2 * k)}|, |{v(src + 2 * k + 1)}|, {d}")

    def scale_pack(src, f):
        for k in range(0, 16, 2):
            G(f"v_pk_mul_f32 {v(src + k, 2)}, {v(src + k, 2)}, v[{f}:{f + 1}] {lo}")
        for k in range(8):
            G(f"v_cvt_pk_f16_f32 {v(src + k)}, {v(src + 2 * k)}, {v(src + 2 * k + 1)}")
    seg("B0")
    G(f"{mf} {v(D0_, 16)}, {v(XRAW, 4)}, {v(SEL1, 4)}, 0")
    if role == "B0":
        stamp()
    G(f"{mf} {v(D0_, 16)}, {v(XRAW + 4, 4)}, {v(SEL1 + 4, 4)}, {v(D0_, 16)}")
    G(f"{mf} {v(D1_, 16)}, {v(XRAW, 4)}, {v(HRAW, 4)}, 0")
    G("s_nop 7")
    G(f"{mf} {v(D1_, 16)}, {v(XRAW + 4, 4)}, {v(HRAW + 4, 4)}, {v(D1_, 16)}")
    absmax("v17", D0_)
    G(f"v_mul_f32_e64 v17, v17, |{v(HL)}|")
    for ctl in ("quad_perm:[1,0,3,2]", "quad_perm:[2,3,0,1]", "row_half_mirror", "row_mirror"):
        G(f"v_max_f32_dpp v17, v17, v17 {dpp(ctl)}")
    for i in range(4):
        G(f"v_readlane_b32 s{42 + i}, v17, {16 * i}")
    G("s_max_u32 s42, s42, s43")
    G("s_max_u32 s44, s44, s45")
    G("s_max_u32 s42, s42, s44")
    G("s_lshr_b32 s42, s42, 23")
    G("s_sub_i32 s42, 136, s42")
    G("s_min_i32 s42, s42, 40")
    G("s_lshl_b32 s45, s42, 23")
    G(f"s_add_u32 s44, s45, {f32(half_log2e * cfg.comp)}")
    G(f"s_add_u32 s45, s45, {f32(half_log2e)}")
    G(f"v_mul_f32_e64 v16, s44, |{v(HL)}|")
    G("v_mov_b32 v18, s45")
    G("v_mov_b32 v20, s42")
    G("v_cndmask_b32_e64 v18, 0, v18, s[52:53]")
    G("ds_write_b32 v15, v20")
    scale_pack(D0_, 16)
    pub(6, D0_)
    pub(7, D0_ + 4)
    scale_pack(D1_, 18)
    G("s_mov_b32 exec_lo, 0x55555555")
    G("s_mov_b32 exec_hi, exec_lo")
    pub(8, D1_)
    pub(9, D1_ + 4)
    G("s_mov_b64 exec, -1")
    G("s_branch L_bar")
    seg("B1")
    G("L_p1:")
    G(f"{mf} {v(D0_, 16)}, {v(SEL1, 4)}, {v(XRAW, 4)}, 0")
    if role == "B1":
        stamp()
    G(f"{mf} {v(D0_, 16)}, {v(SEL1 + 4, 4)}, {v(XRAW + 4, 4)}, {v(D0_, 16)}")
    G(f"{mf} {v(D1_, 16)}, {v(SEL1, 4)}, {v(HRAW, 4)}, 0")
    G(f"{mf} {v(D1_, 16)}, {v(SEL1 + 4, 4)}, {v(HRAW + 4, 4)}, {v(D1_, 16)}")
    G("s_brev_b32 s44, 1")
    for k in range(16):
        G(f"v_mul_f32_e64 {v(D0_ + k)}, {v(D0_ + k)}, |{v(D1_ + k)}|")
    for k in range(8):
        G(f"v_xor_b32 {v(D1_ + k)}, {v(D1_ + k)}, {v(D1_ + 8 + k)}")
    for k in range(8):
        G(f"v_and_or_b32 {v(D1_ + k)}, {v(D1_ + k)}, s44, 1.0")
    for i in range(6):
        pub(i, D0_ + 4 * i)
    G("s_branch L_bar")
    seg("B2")
    G("L_p2:")
    neg = "neg_lo:[0,1,0] neg_hi:[0,1,0]"
    G(f"v_pk_maximum3_f16 v21, {v(XRAW)}, {v(XRAW)}, 0 {neg}")
    if role == "B2":
        stamp()
    for k in range(1, 4):
        G(f"v_pk_maximum3_f16 v21, {v(XRAW + k)}, {v(XRAW + k)}, v21 {neg}")
    G("v_max_u32_sdwa v21, v21, v21 dst_sel:DWORD dst_unused:UNUSED_PAD src0_sel:WORD_0 src1_sel:WORD_1")
    G("s_mov_b32 s44, 0x80008000")
    G("v_mov_b32 v20, 0x3f803f80")
    G(f"v_max_u32_dpp v21, v21, v21 {dpp('quad_perm:[1,0,3,2]')}")
    G(f"v_and_or_b32 {v(HS)}, {v(HS)}, s44, v20")
    G(f"v_and_or_b32 {v(HS + 1)}, {v(HS + 1)}, s44, v20")
    G(f"v_max_u32_dpp v21, v21, v21 {dpp('quad_perm:[2,3,0,1]')}")
    G("v_add_u32 v21, -1, v21")
    for sg in range(2):
        smask(40, lanemask(lambda l: (l & 15) == 4 * sg))
        G(f"v_min_u32_dpp v21, v21, v21 {dpp('row_ror:' + str(4 + 4 * sg))}")
        for k in range(2):
            G(f"v_cndmask_b32_e64 {v(D0_ + 2 * sg + k)}, 0, {v(HS + k)}, s[40:41]")
    for i in range(4):
        G(f"v_readlane_b32 s{42 + i}, v21, {16 * i}")
    pub(10, D0_)
    G("\n".join(["s_min_u32 s42, s42, s43", "s_min_u32 s44, s44, s45", "s_min_u32 s44, s44, s42", "s_add_u32 s44, s44, 1",
                 "s_bfe_u32 s44, s44, 0x80007", f"s_sub_i32 s42, {127 + cfg.target}, s44", "s_min_i32 s42, s42, 40",
                 "s_max_i32 s42, s42, -64", "s_add_i32 s44, s42, 127", "s_lshl_b32 s44, s44, 7"]))
    G(f"v_lshlrev_b32_e64 v21, {v(SH)}, s44")
    G("v_mov_b32 v20, s42")
    for R in range(4):
        G(f"v_cndmask_b32_e64 {v(D1_ + R)}, 0, v21, s[{sSELM + 2 * R}:{sSELM + 2 * R + 1}]")
    G("ds_write_b32 v15, v20 offset:4")
    pub(11, D1_)
    G("s_branch L_bar")
    seg("B3")
    G("L_p3:")
    G(f"{mf} {v(D0_, 16)}, {v(SEL1, 4)}, {v(XRAW, 4)}, 0")
    if role == "B3":
        stamp()
    G(f"{mf} {v(D0_, 16)}, {v(SEL1 + 4, 4)}, {v(XRAW + 4, 4)}, {v(D0_, 16)}")
    absmax("v17", D0_)
    G("v_readlane_b32 s42, v17, 0")
    G("v_readlane_b32 s43, v17, 32")
    G("s_max_u32 s42, s42, s43")
    G("s_lshr_b32 s42, s42, 23")
    G("s_sub_i32 s42, 141, s42")
    G("s_min_i32 s42, s42, 40")
    G("v_mov_b32 v20, s42")
    G("v_ldexp_f32 v18, 1.0, s42")
    G("ds_write_b32 v15, v20 offset:8")
    G("v_cndmask_b32_e64 v18, 0, v18, s[52:53]")
    scale_pack(D0_, 18)
    G("s_mov_b32 exec_lo, 0xaaaaaaaa")
    G("s_mov_b32 exec_hi, exec_lo")
    pub(8, D0_)
    pub(9, D0_ + 4)
    G("s_mov_b64 exec, -1")
    G("s_waitcnt vmcnt(0)")
    A.autowait = False
    seg("both")
    G("L_bar:")
    G("s_waitcnt lgkmcnt(0)")
    stamp()
    G("s_barrier")
    G("ds_read_b96 v[16:18], v15")
    for reg, ad_, i in ([(SEL, 23, 11)] + [(BIAS + 4 * k, 23, k) for k in range(4)] + [(WP, 23, 6), (WP + 4, 23, 7), (ALIN, 23, 8), (ALIN + 4, 23, 9)]
                        + [(RR, 23, 4), (RR + 4, 23, 5), (AABS, 23, 10), (ALIN + 8, 22, 8), (ALIN + 12, 22, 9), (AABS + 4, 22, 10)]):
        G(f"ds_read_b128 {v(reg, 4)}, v{ad_} offset:{1024 * i}")
    G(f"s_cmp_ge_u32 s{sW}, 4")
    G("s_cbranch_scc1 L_b3")
    seg("A")
    G(idx1)
    for g in range(cfg.D0, D):
        G(g_addr(g))
        G(g_load(g))
    G("s_branch L_c3")
    seg("B")
    G("L_b3:")
    G(idx0)
    seg("both")
    G("L_c3:")
    G("s_waitcnt lgkmcnt(10)" if not cfg.stamps else "s_waitcnt lgkmcnt(0)")
    G(f"v_readfirstlane_b32 s{sK}, v17")
    G("v_lshl_add_u32 v16, v17, 1, v16")
    G("v_lshl_add_u32 v18, v17, 1, v18")
    G(f"v_mov_b32 v20, {f32(half_log2e * cfg.comp)}")
    G("v_ldexp_f32 v20, v20, v16")
    G("v_sub_u32 v16, 0, v16")
    G("v_sub_u32 v18, 0, v18")
    G("v_ldexp_f32 v16, 1.0, v16")
    G("v_ldexp_f32 v18, 1.0, v18")
    for k in range(0, 16, 2):
        G(f"v_pk_mul_f32 {v(BIAS + k, 2)}, {v(BIAS + k, 2)}, v[20:21] {lo}")
    G(f"v_readfirstlane_b32 s{sSC}, v16")
    G(f"v_readfirstlane_b32 s{sOSC}, v18")
    G("s_waitcnt lgkmcnt(0)")
    G(f"s_cmp_ge_u32 s{sW}, 4")
    G("s_cbranch_scc0 L_start")
    seg("B")
    waitvm(("v", IDX))
    for k in range(2):
        G(f"v_lshlrev_b32 {v(IDX + k)}, 6, {v(IDX + k)}")
    G("s_nop 0")
    G("L_retry:")
    first_gathers()
    seg("both")
    G("L_start:")
    G(f"s_setprio {cfg.prio[0]}")
    stamp(True)
    conv_at = {u: g for g, u in enumerate(cfg.convU) if u >= 0}
    nstart = sum(u < 0 for u in cfg.convU)
    st = dict(credit=0.0, maxdone=0, odd=False, written=-1, pend_c=None, g_ready=None, gnext=D, gallow=D, cur=-1, shifted=False)
    rq = [(b, x, q) for b in range(2) for x in VORD for q in range(2)]
    issued, at, slot = {}, {}, {}
    free = list(range(NS))
    vreg = lambda b, x: SLOT[slot[b, x]]

    def can_read():
        if not rq:
            return False
        b, x, q = rq[0]
        return 7 * b + GNEED[x] <= st["written"] and (q == 1 or bool(free))

    def do_read():
        b, x, q = rq.pop(0)
        if q == 0:
            slot[b, x] = free.pop(0)
        issued[b, x] = q + 1
        at[b, x] = st["cur"]
        A(f"ds_read_b128 {v(vreg(b, x) + 4 * q, 4)}, {v(AD[VEC[x][0]])} offset:{VEC[x][1] * FS + 32 * q}")

    def P(n, k):
        b, u = divmod(n, UB)
        xa, xb = PAIRS[u]
        d = PL(n) + k if k < 4 else PH + k - 4
        A(f"v_pk_mul_f16 {v(d)}, {v(vreg(b, xa) + k)}, {v(vreg(b, xb) + k)}")
    F = lambda n, k: A(f"v_fma_f32 {v(X(n) + k)}, |{v(X(n) + k)}|, {v(RR + k)}, |{v(X(n) + 8 + k)}|")
    A.autowait = True
    win = [Xr[0], Xr[1], CV]
    for g in range(2):
        A(c_m(g, win[g]))
        if g == 0:
            stamp(True)
        A(g_addr(D + g))
        A(g_load(D + g))
    for g in range(2):
        A("\n".join(c_ops(win[g])))
        A(c_w(g, win[g]))
        st["written"] = g
    while can_read():
        do_read()
    st["gnext"] = st["gallow"] = D + 2
    assert nstart in (2, 3)
    if nstart == 3:
        A(c_m(2, CV))
        st["pend_c"] = 2
        st["gallow"] = D + 3
    for k in range(4):
        P(0, k)
    A("s_waitcnt lgkmcnt(0)")
    A("s_nop 0")
    A.autowait = False
    stamp(True)
    A(".p2align 3")
    main0 = len(A.ins)

    sm, maxq = [], []
    for b in range(2):
        T0, chunks = b * NT, cfg.chunks[b]
        nch = len(chunks)
        assert sum(chunks) == NT
        rdy = lambda T: b * UB + min(2 * (T - b * NT) + 1, UB - 1) + 2
        for c, sz in enumerate(chunks):
            Ts = list(range(T0, T0 + sz))
            T0 += sz
            pend = []
            mq = lambda T, text, Tr: maxq.append((rdy(T), 1, text, deadline(Tr)))
            for T in Ts:
                if T % NT == NT - 1:
                    mq(T, f"v_add_f32@ {v(tilereg(T))}, {v(tilereg(T))}, {v(vMASK)}", T)
                pend.append(T)
                first = c == 0 and pend[0] == Ts[0]
                r_ = [v(tilereg(q)) for q in pend]
                if first and sz & 1:
                    if len(pend) == 3:
                        mq(T, f"v_max3_f32 {v(vM)}, {r_[0]}, {r_[1]}, {r_[2]}", pend[0])
                        pend = []
                elif len(pend) == 2:
                    mq(T, f"v_max_f32@ {v(vM)}, {r_[0]}, {r_[1]}" if first else f"v_max3_f32 {v(vM)}, {r_[0]}, {r_[1]}, {v(vM)}", pend[0])
                    pend = []
            if pend:
                mq(pend[0], f"v_max_f32@ {v(vM)}, {v(tilereg(pend[0]))}, {v(vM)}", pend[0])
            ready = rdy(Ts[-1])
            nm, old = vNM[b][(nch - 1 - c) & 1], vNM[b][(nch - c) & 1]
            L_, ACC = vL[b], vACC[b]
            add = lambda cost, text, T=None, gate=0: sm.append((ready, cost, text, None if T is None else deadline(T), gate))
            add(1, f"v_mul_f32_e64 {v(nm)}, -{v(vM)}, s{sSC}", None, len(maxq))

            def head(T):
                add(1, f"v_fma_f32 {v(vT[T & 1])}, {v(tilereg(T))}, s{sSC}, {v(nm)}", T)
                add(2, f"v_exp_f32@ {v(vT[T & 1])}, {v(vT[T & 1])}")

            def tailops(T):
                t = vT[T & 1]
                if c == 0 and T == Ts[0]:
                    add(1, f"v_mul_f32@ {v(ACC)}, {v(t)}, {v(tilereg(T) + 1)}", T)
                    return
                add(1, f"v_fmac_f32@ {v(ACC)}, {v(t)}, {v(tilereg(T) + 1)}", T)
                if c == 0 and T == Ts[1]:
                    add(1, f"v_add_f32@ {v(L_)}, {v(vT[0])}, {v(vT[1])}")
                elif T == Ts[0]:
                    add(1, f"v_fma_f32 {v(L_)}, {v(L_)}, {v(old)}, {v(t)}")
                else:
                    add(1, f"v_add_f32@ {v(L_)}, {v(L_)}, {v(t)}")
            if c:
                add(1, f"v_sub_f32@ {v(old)}, {v(nm)}, {v(old)}")
                add(2, f"v_exp_f32@ {v(old)}, {v(old)}")
            head(Ts[0])
            if c:
                add(1, f"v_mul_f32@ {v(ACC)}, {v(ACC)}, {v(old)}")
                rest = Ts
            else:
                head(Ts[1])
                tailops(Ts[0])
                tailops(Ts[1])
                head(Ts[2])
                rest = Ts[2:]
            for i, T in enumerate(rest):
                if i + 1 < len(rest):
                    head(rest[i + 1])
                tailops(T)

    def emit(text):
        if "@" in text:
            A(text.replace("@", "_e32" if st["odd"] else "_e64"))
            st["odd"] = False
        else:
            align()
            A(text)

    def small(text):
        A(text)
        st["odd"] = not st["odd"]

    def align():
        if st["odd"]:
            small("s_nop 0")

    def softmax_slots(n, budget, late=0):
        used = cnt = 0
        while used < budget:
            lim = next((s_[4] for s_ in sm if s_[4]), 10 ** 9)
            if maxq and maxq[0][0] <= n and st["maxdone"] < lim:
                it = maxq.pop(0)
                st["maxdone"] += 1
            elif sm and sm[0][0] <= n and (sm[0][4] == 0 or st["maxdone"] >= sm[0][4]):
                it = sm.pop(0)
            else:
                break
            assert it[3] is None or n + late <= it[3], f"tile read too late in unit {n}: {it}"
            emit(it[2])
            used += it[1]
            cnt += 1
        return used, cnt

    def urgent(n0, per=1):
        return any(n0 + i // per > b * UB + FIRST[x] - cfg.urg for i, (b, x, q) in enumerate(rq[:10]))

    def hook(nxt_h2, per=1):
        if can_read() and urgent(nxt_h2, per):
            do_read()
            return 1
        return 0

    def lg_count(n):
        b, u = divmod(n, UB)
        regs = {("v", vreg(b, x) + k) for x in PAIRS[u] for k in range(8)}
        last = max([i for i, q in enumerate(A.lg) if q[0] & regs], default=-1)
        return [f"lgkmcnt({len(A.lg) - 1 - last})"] if last >= 0 else []

    def vm_count(key):
        last = max([i for i, q in enumerate(A.vm) if key in q[0]], default=-1)
        return [len(A.vm) - 1 - last] if last >= 0 else []
    ready2 = lambda n: all(issued.get((n // UB, x)) == 2 for x in PAIRS[n % UB])
    A.nopad = True
    for n in range(NP + 1):
        b, u = divmod(n, UB)
        live = n < NP
        st["cur"] = n
        par, T = u & 1, tileof(n)
        if n >= NP - 1:
            A.nopad = False
        if live:
            A(f"{mh} {v(X(n), 16)}, {v(WP, 4)}, {v(PL(n), 4)}, {v(BIAS, 16)}")
            hook(n, 3)
            for k in range(4, 8):
                P(n, k)
            for x in PAIRS[u]:
                if LAST[x] == u:
                    free.append(slot[b, x])
        if n:
            F(n - 1, 2)
            F(n - 1, 3)
        else:
            A("s_nop 0")
            A("s_nop 0")
        extra = 0
        if live:
            A(f"{mh} {v(X(n), 16)}, {v(WP + 4, 4)}, {v(PH, 4)}, {v(X(n), 16)}")
        if n + 1 < NP:
            assert ready2(n + 1), f"vectors of pair {n + 1} not issued"
            w_ = lg_count(n + 1)
            if w_:
                small("s_waitcnt " + w_[0])
                align()
                extra += 2
            else:
                extra += hook(n, 3)
        if n:
            for k in range(4, 8):
                F(n - 1, k)
        if n + 1 < NP:
            P(n + 1, 0)
            P(n + 1, 1)
        if n:
            A(f"v_smfmac_f32_16x16x64_bf16 {v(tilereg(tileof(n - 1)), 4)}, {v(AABS + 4 * ((n - 1) % UB & 1), 4)}, {v(X(n - 1), 8)}, {v(vSIDX)}")
        conv = conv_at.get(n)
        if st["g_ready"] is not None:
            A(g_load(st["g_ready"]))
            st["g_ready"] = None
            extra += 1
        elif can_read():
            do_read()
            extra += 1
        if n and n in cfg.prio:
            small(f"s_setprio {cfg.prio[n]}")
            extra += 1
        vmw = []
        want_g = st["gnext"] < min(14, st["gallow"] + (conv is not None))
        shift = want_g and st["gnext"] >= 7 and not st["shifted"]
        if conv is not None:
            assert conv < st["gnext"]
            vmw += vm_count(("v", greg(conv)))
        if shift:
            vmw += vm_count(("v", IDX + 2))
        w_ = [f"vmcnt({min(vmw)})"] if vmw else []
        if n + 2 < NP and ready2(n + 2) and all(at[(n + 2) // UB, x] < n for x in PAIRS[(n + 2) % UB]):
            w_ += lg_count(n + 2)
        if w_:
            small("s_waitcnt " + " ".join(w_))
            extra += 1
        st["credit"] += cfg.rate
        cnt = 0
        if shift:
            st["shifted"] = True
            for k in (2, 3):
                emit(f"v_lshlrev_b32@ {v(IDX + k)}, 6, {v(IDX + k)}")
            cnt += 2
        soon = conv is not None or (n + 1) in conv_at
        budget = (0 if cnt or st["pend_c"] is not None else 1) if soon else st["credit"]
        if st["odd"] and budget == 0:
            budget = 1
        acc_ = sum(q_[1] for q_ in maxq if q_[0] <= n)
        for it in sm[:40]:
            if it[0] > n:
                break
            acc_ += it[1]
            if it[3] is not None:
                budget = max(budget, acc_ - 4 * (it[3] - n))
        used, c_ = softmax_slots(n, budget)
        st["credit"] -= used
        cnt += c_
        if st["pend_c"] is not None:
            if n == 0:
                A("s_nop 0")
                A("s_nop 0")
            for o in c_ops(CV):
                emit(o)
            cnt += 4
        if want_g and conv is None and not shift:
            emit(g_addr(st["gnext"]))
            st["g_ready"] = st["gnext"]
            st["gnext"] += 1
            cnt += 1
        align()
        if live and extra + cnt < (5 if n == 0 else 1):
            small("s_nop 4" if n == 0 else "s_nop 0")
            small("s_nop 0")
        if live:
            A(f"{ml} {v(tilereg(T), 4)}, {v(ALIN + 8 * par, 4)}, {v(PL(n), 4)}, {v(tilereg(T), 4) if par else '0'}")
        if st["pend_c"] is not None:
            gb, gt = divmod(st["pend_c"], 7)
            assert not any(b2 < gb and gt in GTOUCH[x] for b2, x, q in rq), "LDS region still to be read"
            A(c_w(st["pend_c"], CV))
            st["written"] = st["pend_c"]
            st["pend_c"] = None
        else:
            hook(n + 1)
        if n + 1 < NP:
            P(n + 1, 2)
            P(n + 1, 3)
        if live:
            A(f"{ml} {v(tilereg(T), 4)}, {v(ALIN + 8 * par + 4, 4)}, {v(PH, 4)}, {v(tilereg(T), 4)}")
            hook(n + 1)
            F(n, 0)
            F(n, 1)
        if conv is not None:
            A(c_m(conv, CV))
            st["pend_c"] = conv
            st["gallow"] = conv + D + 1
            k = 6
            if want_g:
                emit(g_addr(st["gnext"]))
                st["g_ready"] = st["gnext"]
                st["gnext"] += 1
                k -= 1
            used, c_ = softmax_slots(n, k, 1)
            st["credit"] -= used
        st["credit"] = min(st["credit"], 6.0 if (n + 1) in conv_at else 2.0)
    softmax_slots(NP + 1, 10 ** 6)
    assert not sm and not maxq and not rq and st["gnext"] == 14 and st["g_ready"] is None
    main1 = len(A.ins)
    stamp(True)
    n0, n1, t0, t1, ad = vNM[0][0], vNM[1][0], v(vT[0]), v(vT[1]), v(vM)
    A(f"v_permlane32_swap_b32 {v(n0)}, {v(n1)}")
    A("s_lshl_b32 s43, s3, 4")
    A(f"v_min_f32 {t0}, {v(n0)}, {v(n1)}")
    A(f"v_permlane32_swap_b32 {v(vL[0])}, {v(vL[1])}")
    A(f"v_bfe_u32 {ad}, v0, 2, 4")
    A(f"v_min_f32_dpp {t0}, {t0}, {t0} {dpp('row_ror:4')}")
    A(f"v_permlane32_swap_b32 {v(vACC[0])}, {v(vACC[1])}")
    A(f"v_lshrrev_b32 v17, 3, {v(vCH)}")
    A(f"v_min_f32_dpp {t0}, {t0}, {t0} {dpp('row_ror:8')}")
    A(f"v_mov_b32 {t1}, {t0}")
    A(f"v_add3_u32 {ad}, {ad}, v17, s43")
    A("s_movk_i32 s44, 0x1f8")
    A(f"v_permlane16_swap_b32 {t0}, {t1}")
    A(f"v_min_f32 {t0}, {t0}, {t1}")
    A(f"v_sub_f32 {v(n0)}, {t0}, {v(n0)}")
    A(f"v_sub_f32 {v(n1)}, {t0}, {v(n1)}")
    A(f"v_exp_f32 {v(n0)}, {v(n0)}")
    A(f"v_exp_f32 {v(n1)}, {v(n1)}")
    A(f"v_mul_f32 {t0}, {v(n0)}, {v(vL[0])}")
    A(f"v_mul_f32 {t1}, {v(n0)}, {v(vACC[0])}")
    A(f"v_fmac_f32 {t0}, {v(n1)}, {v(vL[1])}")
    A(f"v_fmac_f32 {t1}, {v(n1)}, {v(vACC[1])}")
    A("s_mov_b32 s40, 15")
    A("s_mov_b32 s41, 15")
    A(f"v_permlane16_swap_b32 {t0}, {t1}")
    A(f"v_add_f32 {t0}, {t0}, {t1}")
    A(f"s_andn2_b64 s[40:41], s[40:41], s[{sDONE}:{sDONE + 1}]")
    A(f"s_cmp_le_i32 s{sK}, -64")
    A(f"v_add_f32_dpp {t0}, {t0}, {t0} {dpp('row_ror:4')}")
    A("s_cselect_b64 s[42:43], -1, 0")
    A(f"v_add_f32_dpp {t0}, {t0}, {t0} {dpp('row_ror:8')}")
    A(f"v_mov_b32 {t1}, {t0}")
    A(f"v_permlane16_swap_b32 {t0}, {t1}")
    A(f"v_rcp_f32 {t0}, {t0}")
    A(f"v_mul_f32 {t1}, s{sOSC}, {t1}")
    A(f"v_mul_f32 {t0}, {t0}, {t1}")
    A(f"v_cmp_class_f32_e64 vcc, {t0}, s44")
    A(f"v_cvt_pk_bf16_f32 {t0}, {t0}, {t0}")
    A("s_or_b64 s[42:43], s[42:43], vcc")
    A("s_and_b64 exec, s[40:41], s[42:43]")
    A("s_cbranch_execz L_nostore")
    A(f"buffer_store_short {t0}, {ad}, s[24:27], 0 offen")
    A("L_nostore:")
    A(f"s_or_b64 s[{sDONE}:{sDONE + 1}], s[{sDONE}:{sDONE + 1}], exec")
    A("s_mov_b64 exec, -1")
    A("s_andn2_b64 s[40:41], s[40:41], s[42:43]")
    A("s_cbranch_scc0 " + ("L_fin" if cfg.stamps else "L_end"))
    A(f"s_sub_i32 s{sK}, s{sK}, 4")
    A("s_mov_b32 s44, 0x02000200")
    for k in range(4):
        A(f"v_pk_sub_u16 {v(SEL + k)}, {v(SEL + k)}, s44 clamp")
    for k in range(16):
        A(f"v_mul_f32 {v(BIAS + k)}, {f32(2.0 ** -8)}, {v(BIAS + k)}")
    for s_ in (sSC, sOSC):
        A(f"s_add_u32 s{s_}, s{s_}, 0x04000000")
        A(f"s_min_u32 s{s_}, s{s_}, 0x7f800000")
    A("s_branch L_retry")
    if cfg.stamps:
        A("L_fin:")
        A("s_waitcnt vmcnt(0)")
        stamp(True, True)
        if cfg.diag:
            i_, j_ = cfg.diag
            A(f"s_sub_u32 s44, s{58 + 4 * j_}, s{58 + 4 * i_}")
            A("s_lshl_b32 s44, s44, 3")
            if cfg.diagrole:
                A(f"s_cmp_ge_u32 s{sW}, 4")
                A("s_cbranch_scc1 L_end" if cfg.diagrole == "A" else "s_cbranch_scc0 L_end")
            A("s_min_u32 s44, s44, 30000")
            A("s_mov_b32 s45, 200000")
            A("L_spin:")
            A("s_sleep 4")
            A("s_memrealtime s[42:43]")
            A("s_waitcnt lgkmcnt(0)")
            A(f"s_sub_u32 s42, s42, s{58 + 4 * (nst[0] - 1)}")
            A("s_cmp_ge_u32 s42, s44")
            A("s_cbranch_scc1 L_end")
            A("s_sub_u32 s45, s45, 1")
            A("s_cmp_lg_u32 s45, 0")
            A("s_cbranch_scc1 L_spin")
        else:
            A("s_mov_b64 exec, 1")
            A("s_lshl_b32 s3, s3, 7")
            A("v_mov_b32 v4, s3")
            for i in range(nst[0]):
                A(f"v_mov_b32 v2, s{56 + 4 * i}")
                A(f"v_mov_b32 v3, s{58 + 4 * i}")
                A(f"global_store_dwordx2 v4, v[2:3], s[18:19] offset:{8 * i}")
    A("L_end:")
    A("s_endpgm")
    segs.append(("end", len(A.ins)))
    if cfg.verbose:
        cyc, stall = simulate(A.ins[main0:main1])
        vec = simulate([i for i in A.ins[main0:main1] if i.kind in ("valu", "mfma")])
        kinds = {}
        for i in A.ins[main0:main1]:
            if i.real:
                kinds[i.kind] = kinds.get(i.kind, 0) + 1
        print(f"role {role}: main model {cyc} alone (stall {stall}), vector only {vec}, {kinds}; slots {NS}; prologue model {simulate(A.ins[:main0])[0]}; pads {A.pads}")
    return A, segs


def gen(cfg):
    tr = {r: gen_role(cfg, r) for r in ("A", "B0", "B1", "B2", "B3")}
    out = Asm()
    sa = tr["A"][1]
    for i in range(len(sa) - 1):
        parts = [A.ins[sg[i][1]:sg[i + 1][1]] for A, sg in tr.values()]
        parts = [p for p in parts if p]
        for p in parts[1:]:
            assert [x.text for x in p] == [x.text for x in parts[0]], f"segment {i} ({sa[i][0]}) differs between the roles"
        out.ins += parts[0]
    return out


HEAD = """; @launch grid=(256,1,1) block=(512,1,1) lds={lds}
.amdgcn_target "amdgcn-amd-amdhsa--gfx950"
.text
.globl {n}_kernel
.p2align 8
.type {n}_kernel,@function
{n}_kernel:
"""
TAIL = """.section .rodata,"a"
.p2align 6
.amdhsa_kernel {n}_kernel
  .amdhsa_next_free_vgpr 256
  .amdhsa_next_free_sgpr 96
  .amdhsa_accum_offset 256
  .amdhsa_group_segment_fixed_size 0
  .amdhsa_kernarg_size 88
  .amdhsa_user_sgpr_count 2
  .amdhsa_user_sgpr_kernarg_segment_ptr 1
  .amdhsa_system_sgpr_workgroup_id_x 1
.end_amdhsa_kernel
"""

if __name__ == "__main__":
    out = sys.argv[1]
    for kv in sys.argv[2:]:
        k, val = kv.split("=", 1)
        assert hasattr(Cfg, k), k
        setattr(Cfg, k, eval(val))
    A = gen(Cfg)
    open(out, "w").write(HEAD.format(n=NAME, lds=LDS_BYTES) + A.text() + TAIL.format(n=NAME))
    print("instructions:", sum(i.real for i in A.ins), "bytes:", sum(size_of(i) for i in A.ins if i.real), "max vgpr:", A.maxv(), "lds:", LDS_BYTES)
```

```python
import sys, math
from asmlib import Asm, Ins, size_of, simulate
from gen3 import (NAME, f32, v, lanemask, PAT, VEC, split_unit, vpos, field_of)

FS = 272
WS = 28 * FS
CONST = 8 * WS
LDS_BYTES = CONST + 12 * 1024 + 16
UB, NT = 41, 21
NP = 2 * UB


class Cfg:
    units = ("A0A1 A1A3 A0A3 B1aA0 B1aA1 B1bA0 B1bA1 B2aA0 B2aA1 B2bA0 B2bA1 B0B1 B1B3 B0B3 LXLY "
             "C1aA0 C1aA1 C1aB0 C1aB1 C1bA0 C1bA1 C1bB0 C1bB1 C2aA0 C2aA1 C2aB0 C2aB1 C0C1 C1C3 C0C3 "
             "C2bA1 C2bB1 C2bA0 C2bB0 I1A0 I2A0 I1B0 I2B0 I1C0 I2C0 MXMY")
    NB = 6
    Z = 10
    stamps = False
    diag = None
    diagrole = None
    D = 4
    D0 = 3
    convU = [-1, -1, -1, 3, 10, 17, 27, 33, 35, 38, 42, 50, 58, 68]
    rate = 2.2
    prio = {0: 3, 50: 2, 72: 1, 81: 0}
    codepf = True
    comp = 1.0028
    target = 3
    idxflags = "nt"
    gflags = ""
    verbose = True
    urg = 3
    count = False
    hold = 8


def plan(cfg):
    units = cfg.units.split()
    pairs = [split_unit(s) for s in units]
    seen = set()
    for u, (x, y) in enumerate(pairs):
        for r in range(8):
            if units[u] == "MXMY" and r > 4:
                continue
            e = frozenset((field_of(vpos(x, r)), field_of(vpos(y, r))))
            assert len(e) == 2 and e not in seen
            seen.add(e)
    assert len(seen) == 325 and len(pairs) == UB and units[-1] == "MXMY"
    return units, pairs


def gen_role(cfg, role):
    UNITS, PAIRS = plan(cfg)
    VORD = list(dict.fromkeys(x for p in PAIRS for x in p))
    FIRST = {x: min(u for u, p in enumerate(PAIRS) if x in p) for x in VORD}
    LAST = {x: max(u for u, p in enumerate(PAIRS) if x in p) for x in VORD}
    GNEED = {x: max(vpos(x, r) for r in range(8)) // 4 for x in VORD}
    GTOUCH = {x: {vpos(x, r) // 4 for r in range(8)} for x in VORD}
    NB, D = cfg.NB, cfg.D
    AD = dict(R=1, R1=2, R3=3, H0=4, H2=5, B=6, L=7, Y=8)
    vWA, vCH, vGA, vSIDX, vMASK, vIA = 9, 10, 11, 12, 13, 14
    vL, vACC = [16, 18], [17, 19]
    IDX, PH, PLr, Xr = 32, 20, [24, 28], [36, 52]
    BIAS, RR, WP, ALIN, AABS, SEL, CV, TILE = 68, 84, 92, 100, 116, 124, 128, 144
    STG = TILE + 2 * NB + 2
    S0 = STG + 4 * D
    NS = (256 - S0) // 8
    SLOT = [S0 + 8 * i for i in range(NS)]
    assert NS >= 8
    sW, sK, sWW, sQ, sSC, sOSC, sGC = 28, 30, 31, 46, 47, 48, 49
    sDONE, sSELM = 50, 32
    mf, mh, ml = "v_mfma_f32_32x32x16_bf16", "v_mfma_f32_32x32x16_f16", "v_mfma_f32_16x16x32_f16"
    X = lambda n: Xr[n & 1]
    PL = lambda n: PLr[n & 1]
    tileof = lambda n: (n // UB) * NT + (n % UB >> 1)
    tilereg = lambda T: TILE + 2 * (T % NB)
    tfirst = lambda T: (T // NT) * UB + 2 * (T % NT)
    deadline = lambda T: tfirst(T + NB - 1 if T % NB else T + NB)
    A = Asm()
    segs = []
    on = [True]

    class Gate:
        def __call__(self, t):
            if on[0]:
                A(t)
    G = Gate()

    def seg(r):
        on[0] = r == "both" or role in r.split() or (r == "B" and role != "A")
        segs.append((r, len(A.ins)))

    def smask(reg, m):
        G(f"s_mov_b32 s{reg}, 0x{m & 0xffffffff:08x}")
        G(f"s_mov_b32 s{reg + 1}, " + (f"s{reg}" if m >> 32 == m & 0xffffffff else f"0x{m >> 32:08x}"))
    nst = [0]

    def stamp(wait=False, force=False):
        if cfg.stamps:
            i = nst[0]
            nst[0] += 1
            if cfg.diag and i not in cfg.diag and not force:
                return
            A.raw(f"s_memtime s[{56 + 4 * i}:{57 + 4 * i}]")
            A.raw(f"s_memrealtime s[{58 + 4 * i}:{59 + 4 * i}]")
            if wait:
                A("s_waitcnt lgkmcnt(0)")
                A("s_nop 0")

    def waitvm(key):
        if on[0]:
            A.wait_vm_for([key])

    def g_addr(g):
        b, t = divmod(g, 7)
        ql, k = (t // 2, t & 1) if t < 6 else (3, 1)
        return f"v_add_u32_dpp {v(vGA)}, {v(IDX + 2 * b + k)}, {v(vCH)} quad_perm:[{ql},{ql},{ql},{ql}] row_mask:0xf bank_mask:0xf"
    greg = lambda g: STG + 4 * (g % D)
    g_load = lambda g: f"buffer_load_dwordx4 {v(greg(g), 4)}, {v(vGA)}, s[20:23], 0 offen {cfg.gflags}".strip()
    c_ops = lambda d: [f"v_cvt_pk_f16_f32 {v(d + k)}, {v(d + 2 * k)}, {v(d + 2 * k + 1)}" for k in range(4)]
    c_m = lambda g, d: f"{mf} {v(d, 16)}, {v(SEL, 4)}, {v(greg(g), 4)}, 0"
    c_w = lambda g, d: f"ds_write_b128 {v(vWA)}, {v(d, 4)} offset:{4 * (g % 7) * FS}"
    dpp = lambda c: f"{c} row_mask:0xf bank_mask:0xf"

    def first_gathers():
        for g in range(D):
            if g == cfg.D0:
                G(f"global_load_dwordx2 {v(IDX + 2, 2)}, {v(vIA)}, s[4:5] offset:416 {cfg.idxflags}")
            G(g_addr(g))
            G(g_load(g))
        if D == cfg.D0:
            G(f"global_load_dwordx2 {v(IDX + 2, 2)}, {v(vIA)}, s[4:5] offset:416 {cfg.idxflags}")

    seg("both")
    G("s_cmp_ge_u32 s2, 256")
    G("s_cbranch_scc1 L_end")
    G("s_load_dwordx4 s[4:7], s[0:1], 0")
    G("s_load_dwordx8 s[8:15], s[0:1], 32")
    G("s_load_dwordx2 s[24:25], s[0:1], 64")
    if cfg.stamps:
        G("s_load_dwordx2 s[18:19], s[0:1], 80")
    stamp()
    if cfg.codepf:
        G("s_getpc_b64 s[40:41]")
        G("L_pc:")
        G("s_bfe_u32 s3, s2, 0x20003")
        G("s_mul_i32 s3, s3, 6144")
        G("v_mad_u32_u24 v1, v0, 12, s3")
        G("v_min_u32 v1, L_end-L_pc, v1")
        G("global_load_dword v25, v1, s[40:41]")
    G("v_lshrrev_b32 v1, 6, v0")
    G("v_bfe_u32 v17, v0, 4, 2")
    G(f"v_readfirstlane_b32 s{sW}, v1")
    G("v_and_b32 v18, 3, v0")
    G("v_bfe_u32 v19, v0, 2, 2")
    G("v_mad_u32_u24 v20, v17, 3, v18")
    G("v_lshlrev_b32 v20, 1, v20")
    G("v_and_b32 v21, 1, v17")
    G("v_add_u32 v21, 23, v21")
    smask(40, lanemask(lambda l: (l & 3) == 3))
    G("v_cndmask_b32_e64 v20, v20, v21, s[40:41]")
    G("v_mad_u32_u24 v20, v19, 26, v20")
    G("s_lshl_b32 s3, s2, 3")
    G(f"s_add_u32 s3, s3, s{sW}")
    G("s_mul_i32 s42, s3, 832")
    G(f"v_lshl_add_u32 {v(vIA)}, v20, 2, s42")
    G(f"v_lshlrev_b32 {v(vCH)}, 4, v18")
    G("v_bfe_u32 v16, v0, 5, 1")
    G("v_lshlrev_b32 v18, 4, v16")
    G(f"s_cmp_ge_u32 s{sW}, 4")
    G("s_cbranch_scc1 L_b1")
    idx0 = f"global_load_dwordx2 {v(IDX, 2)}, {v(vIA)}, s[4:5] {cfg.idxflags}"
    idx1 = f"global_load_dwordx2 {v(IDX + 2, 2)}, {v(vIA)}, s[4:5] offset:416 {cfg.idxflags}"
    seg("A")
    G("s_waitcnt lgkmcnt(0)")
    G(idx0)
    G("s_branch L_c1")
    seg("B")
    G("L_b1:")
    XRAW, HRAW, SEL1 = SLOT[0], SLOT[1], SLOT[2]
    EST, HS, HL, SH = TILE, TILE + 4, TILE + 6, TILE + 7
    D0_, D1_ = Xr
    G("v_and_b32 v17, 19, v0")
    G("v_and_b32 v19, 4, v0")
    G("v_lshl_or_b32 v17, v19, 1, v17")
    G("v_bfe_u32 v19, v0, 3, 1")
    G("v_lshl_or_b32 v17, v19, 2, v17")
    G(f"s_bitcmp1_b32 s{sW}, 0")
    G("s_cbranch_scc1 L_b1b")
    seg("B0 B2")
    G("v_lshl_or_b32 v19, v17, 6, v18")
    G("v_bfe_u32 v21, v0, 2, 4")
    G("s_mov_b32 s42, 400000")
    G(f"v_mad_u32_u24 v21, v21, s42, {v(vCH)}")
    G("v_lshlrev_b32 v17, 1, v17")
    G(f"v_mov_b32 {v(HL)}, 0")
    G("s_waitcnt lgkmcnt(0)")
    G(f"global_load_dwordx4 {v(EST, 4)}, v21, s[6:7]")
    G(f"global_load_dwordx4 {v(XRAW, 4)}, v19, s[8:9]")
    G(f"global_load_dwordx4 {v(XRAW + 4, 4)}, v19, s[8:9] offset:32")
    G(f"s_bitcmp1_b32 s{sW}, 1")
    G("s_cbranch_scc1 L_b1h")
    seg("B0")
    G(f"global_load_short_d16_hi {v(HL)}, v17, s[12:13]")
    G("s_branch L_c1")
    seg("B1 B3")
    G("L_b1b:")
    G("v_and_b32 v20, 16, v0")
    G("v_lshl_or_b32 v20, v16, 3, v20")
    G(f"s_bitcmp1_b32 s{sW}, 1")
    G("s_waitcnt lgkmcnt(0)")
    G("s_cselect_b64 s[10:11], s[14:15], s[10:11]")
    G(f"global_load_dwordx4 {v(XRAW, 4)}, v18, s[10:11]")
    G(f"global_load_dwordx4 {v(XRAW + 4, 4)}, v18, s[10:11] offset:32")
    G("s_cbranch_scc0 L_b1h")
    seg("B3")
    G(f"global_load_dwordx2 {v(HS, 2)}, v20, s[12:13] offset:32")
    G("s_branch L_c1")
    seg("B1 B2")
    G("L_b1h:")
    G(f"global_load_dwordx4 {v(HRAW, 4)}, v18, s[12:13]")
    G(f"global_load_dwordx4 {v(HRAW + 4, 4)}, v18, s[12:13] offset:32")
    seg("both")
    G("L_c1:")
    stamp()
    G("s_mov_b32 s20, s6")
    G("s_mov_b32 s21, s7")
    G("s_mov_b32 s22, 6400000")
    G("s_mov_b32 s23, 0x00020000")
    G("s_mov_b32 s26, 32768")
    G("s_mov_b32 s27, 0x00020000")
    G(f"s_mul_i32 s43, s{sW}, {WS}")
    G(f"s_movk_i32 s44, {FS}")
    G("v_and_b32 v17, 15, v0")
    G("v_lshl_add_u32 v17, v17, 4, s43")
    G("v_bfe_u32 v19, v0, 4, 2")
    G(f"v_mad_u32_u24 {v(vWA)}, v19, s44, v17")
    G(f"v_lshlrev_b32 v17, 2, {v(vCH)}")
    G(f"v_add3_u32 {v(AD['B'])}, v17, v18, s43")
    G("v_bfe_u32 v17, v0, 2, 3")
    mad = lambda p, r: G(f"v_mad_u32_u24 {v(AD[p])}, {r}, s44, {v(AD['B'])}")
    mad("R", "v17")
    G("v_add_u32 v18, 1, v17")
    G("v_and_b32 v18, 7, v18")
    mad("R1", "v18")
    G("v_add_u32 v18, 3, v17")
    G("v_and_b32 v18, 7, v18")
    mad("R3", "v18")
    G("v_and_b32 v18, 3, v17")
    mad("H0", "v18")
    G("v_xor_b32 v19, 2, v18")
    mad("H2", "v19")
    G("v_lshrrev_b32 v19, 2, v17")
    G("v_lshl_add_u32 v18, v19, 3, v18")
    mad("L", "v18")
    G("v_xor_b32 v18, v17, v19")
    mad("Y", "v18")
    G(f"v_mov_b32 {v(vSIDX)}, 0xdddd")
    G("v_mov_b32 v21, 0xff800000")
    smask(40, lanemask(lambda l: l >= 20))
    G(f"v_cndmask_b32_e64 {v(vMASK)}, 0, v21, s[40:41]")
    G("v_and_b32 v23, 63, v0")
    G("v_lshlrev_b32 v23, 4, v23")
    G(f"v_add_u32 v23, {CONST}, v23")
    G("v_xor_b32 v22, 128, v23")
    G(f"v_mov_b32 v15, {CONST + 12 * 1024}")
    assert CONST % 256 == 0
    G(f"s_cmp_ge_u32 s{sW}, 4")
    G("s_cbranch_scc1 L_b2")
    seg("A")
    waitvm(("v", IDX))
    if role == "A":
        stamp()
    for k in range(2):
        G(f"v_lshlrev_b32 {v(IDX + k)}, 6, {v(IDX + k)}")
    for g in range(cfg.D0):
        G(g_addr(g))
        G(g_load(g))
    G("s_branch L_bar")
    seg("B")
    G("L_b2:")
    G(f"v_and_b32 {v(SH)}, 1, v0")
    G(f"v_lshlrev_b32 {v(SH)}, 4, {v(SH)}")
    G("s_movk_i32 s44, 0x3f80")
    G(f"v_lshlrev_b32_e64 v21, {v(SH)}, s44")
    for R in (4, 5, 6, 7, 0, 1, 2, 3):
        m = lanemask(lambda l: (l >> 5) == ((l >> 2) & 1) and ((l >> 1) & 1) + 2 * ((l >> 3) & 3) == R)
        sm_ = sSELM + 2 * (R & 3)
        smask(sm_, m)
        G(f"v_cndmask_b32_e64 {v(SEL1 + R)}, 0, v21, s[{sm_}:{sm_ + 1}]")
    smask(52, lanemask(lambda l: not (l & 10) and ((l >> 2) & 1) == ((l >> 4) & 1)))
    G(f"s_cmp_eq_u32 s{sW}, 5")
    G("s_cbranch_scc1 L_p1")
    G(f"s_cmp_eq_u32 s{sW}, 7")
    G("s_cbranch_scc1 L_p3")
    lo = "op_sel:[0,0] op_sel_hi:[1,0]"
    pub = lambda i, r: G(f"ds_write_b128 v23, {v(r, 4)} offset:{1024 * i}")
    half_log2e = 0.5 * math.log2(math.e)

    def scale_pack(src, f):
        for k in range(0, 16, 2):
            G(f"v_pk_mul_f32 {v(src + k, 2)}, {v(src + k, 2)}, v[{f}:{f + 1}] {lo}")
        for k in range(8):
            G(f"v_cvt_pk_f16_f32 {v(src + k)}, {v(src + 2 * k)}, {v(src + 2 * k + 1)}")
    seg("B0 B2")
    G(f"s_cmp_eq_u32 s{sW}, 6")
    G("s_cselect_b64 s[40:41], -1, 0")
    G("s_waitcnt vmcnt(0)")
    if role in ("B0", "B2"):
        stamp()
    neg = "neg_lo:[0,1,0] neg_hi:[0,1,0]"
    selh = [f"v_cndmask_b32_e64 {v(SEL1 + k)}, {v(SEL1 + k)}, {v(HRAW + k)}, s[40:41]" for k in range(8)]
    G("\n".join(selh[:4]))
    G(f"v_pk_maximum3_f16 v21, {v(EST)}, {v(EST)}, 0 {neg}")
    G(f"v_pk_maximum3_f16 v21, {v(EST + 1)}, {v(EST + 1)}, v21 {neg}")
    G(f"{mf} {v(D0_, 16)}, {v(XRAW, 4)}, {v(SEL1, 4)}, 0")
    G(f"v_pk_maximum3_f16 v21, {v(EST + 2)}, {v(EST + 2)}, v21 {neg}")
    G(f"v_pk_maximum3_f16 v21, {v(EST + 3)}, {v(EST + 3)}, v21 {neg}")
    G("v_max_u32_sdwa v21, v21, v21 dst_sel:DWORD dst_unused:UNUSED_PAD src0_sel:WORD_0 src1_sel:WORD_1")
    G("\n".join(selh[4:6]))
    G(f"v_max_u32_dpp v21, v21, v21 {dpp('quad_perm:[1,0,3,2]')}")
    G("\n".join(selh[6:]))
    G(f"v_max_u32_dpp v21, v21, v21 {dpp('quad_perm:[2,3,0,1]')}")
    G("v_add_u32 v21, -1, v21")
    G(f"{mf} {v(D0_, 16)}, {v(XRAW + 4, 4)}, {v(SEL1 + 4, 4)}, {v(D0_, 16)}")
    G(f"v_min_u32_dpp v21, v21, v21 {dpp('row_ror:4')}")
    G(f"v_min_u32_dpp v21, v21, v21 {dpp('row_ror:8')}")
    for i in range(4):
        G(f"v_readlane_b32 s{42 + i}, v21, {16 * i}")
    G("\n".join(["s_min_u32 s42, s42, s43", "s_min_u32 s44, s44, s45", "s_min_u32 s44, s44, s42", "s_add_u32 s44, s44, 1",
                 "s_bfe_u32 s44, s44, 0x80007", f"s_sub_i32 s42, {127 + cfg.target}, s44", "s_min_i32 s42, s42, 40",
                 "s_max_i32 s42, s42, -40", "s_lshl_b32 s43, s42, 24"]))
    G(f"s_bitcmp1_b32 s{sW}, 1")
    G("s_cbranch_scc1 L_p2")
    seg("B0")
    G(f"s_sub_u32 s44, {f32(half_log2e * cfg.comp * 2.0 ** cfg.Z)}, s43")
    G(f"v_mul_f32_e64 v16, s44, |{v(HL)}|")
    scale_pack(D0_, 16)
    pub(6, D0_)
    pub(7, D0_ + 4)
    G("s_branch L_bar")
    seg("B2")
    G("L_p2:")
    G(f"s_sub_u32 s44, {f32(half_log2e)}, s43")
    G("v_mov_b32 v18, s44")
    G("s_add_i32 s44, s42, 127")
    G("s_lshl_b32 s44, s44, 7")
    G("v_cndmask_b32_e64 v18, 0, v18, s[52:53]")
    G(f"v_lshlrev_b32_e64 v21, {v(SH)}, s44")
    G("v_mov_b32 v20, s42")
    for R in range(4):
        G(f"v_cndmask_b32_e64 {v(D1_ + R)}, 0, v21, s[{sSELM + 2 * R}:{sSELM + 2 * R + 1}]")
    G("ds_write_b32 v15, v20")
    pub(11, D1_)
    scale_pack(D0_, 18)
    G("s_mov_b32 exec_lo, 0x55555555")
    G("s_mov_b32 exec_hi, exec_lo")
    pub(8, D0_)
    pub(9, D0_ + 4)
    G("s_mov_b64 exec, -1")
    G("s_branch L_bar")
    seg("B1")
    A.autowait = True
    G("L_p1:")
    G(f"v_mov_b32 v16, {f32(half_log2e * cfg.comp * 2.0 ** cfg.Z)}")
    G("s_brev_b32 s44, 1")
    G(f"{mf} {v(D0_, 16)}, {v(SEL1, 4)}, {v(XRAW, 4)}, 0")
    if role == "B1":
        stamp()
    G(f"{mf} {v(D0_, 16)}, {v(SEL1 + 4, 4)}, {v(XRAW + 4, 4)}, {v(D0_, 16)}")
    G(f"{mf} {v(D1_, 16)}, {v(SEL1, 4)}, {v(HRAW, 4)}, 0")
    G(f"{mf} {v(D1_, 16)}, {v(SEL1 + 4, 4)}, {v(HRAW + 4, 4)}, {v(D1_, 16)}")
    for k in range(4):
        G(f"v_xor_b32 {v(HRAW + k)}, {v(HRAW + k)}, {v(HRAW + 4 + k)}")
    for k in range(4):
        G(f"v_lshlrev_b32 {v(HRAW + 4 + k)}, 16, {v(HRAW + k)}")
    for k in range(8):
        G(f"v_and_or_b32 {v(CV + k)}, {v(HRAW + (k >> 1) + (0 if k & 1 else 4))}, s44, 1.0")
    pub(4, CV)
    pub(5, CV + 4)
    for k in range(16):
        G(f"v_mul_f32_e64 {v(D0_ + k)}, {v(D0_ + k)}, |{v(D1_ + k)}|")
    for k in range(0, 16, 2):
        G(f"v_pk_mul_f32 {v(D0_ + k, 2)}, {v(D0_ + k, 2)}, v[16:17] {lo}")
    for i in range(4):
        pub(i, D0_ + 4 * i)
    G("s_branch L_bar")
    seg("B3")
    G("L_p3:")
    G("s_mov_b32 s44, 0x80008000")
    G(f"v_mov_b32 v20, 0x{((127 - cfg.Z) << 7) * 0x10001:08x}")
    G(f"{mf} {v(D0_, 16)}, {v(SEL1, 4)}, {v(XRAW, 4)}, 0")
    if role == "B3":
        stamp()
    G(f"{mf} {v(D0_, 16)}, {v(SEL1 + 4, 4)}, {v(XRAW + 4, 4)}, {v(D0_, 16)}")
    G(f"v_and_or_b32 {v(HS)}, {v(HS)}, s44, v20")
    G(f"v_and_or_b32 {v(HS + 1)}, {v(HS + 1)}, s44, v20")
    for sg in range(2):
        smask(40, lanemask(lambda l: (l & 15) == 4 * sg))
        for k in range(2):
            G(f"v_cndmask_b32_e64 {v(D1_ + 2 * sg + k)}, 0, {v(HS + k)}, s[40:41]")
    pub(10, D1_)
    G(f"v_max_f32_e64 v17, |{v(D0_)}|, |{v(D0_ + 1)}|")
    for k in range(1, 8):
        G(f"v_max3_f32 v17, |{v(D0_ + 2 * k)}|, |{v(D0_ + 2 * k + 1)}|, v17")
    G("v_readlane_b32 s42, v17, 0")
    G("v_readlane_b32 s43, v17, 32")
    G("s_max_u32 s42, s42, s43")
    G("s_lshr_b32 s42, s42, 23")
    G("s_sub_i32 s42, 141, s42")
    G("s_min_i32 s42, s42, 40")
    G("v_mov_b32 v20, s42")
    G("v_ldexp_f32 v18, 1.0, s42")
    G("ds_write_b32 v15, v20 offset:4")
    G("v_cndmask_b32_e64 v18, 0, v18, s[52:53]")
    scale_pack(D0_, 18)
    G("s_mov_b32 exec_lo, 0xaaaaaaaa")
    G("s_mov_b32 exec_hi, exec_lo")
    pub(8, D0_)
    pub(9, D0_ + 4)
    G("s_mov_b64 exec, -1")
    A.autowait = False
    seg("both")
    G("L_bar:")
    G("s_waitcnt lgkmcnt(0)")
    stamp()
    G("s_barrier")
    G("ds_read_b64 v[16:17], v15")
    for reg, ad_, i in ([(SEL, 23, 11)] + [(BIAS + 4 * k, 23, k) for k in range(4)] + [(WP, 23, 6), (WP + 4, 23, 7), (ALIN, 23, 8), (ALIN + 4, 23, 9)]
                        + [(RR, 23, 4), (RR + 4, 23, 5), (AABS, 23, 10), (ALIN + 8, 22, 8), (ALIN + 12, 22, 9), (AABS + 4, 22, 10)]):
        G(f"ds_read_b128 {v(reg, 4)}, v{ad_} offset:{1024 * i}")
    G("s_waitcnt lgkmcnt(14)" if not cfg.stamps else "s_waitcnt lgkmcnt(0)")
    G("v_lshl_add_u32 v15, v16, 1, v17")
    G(f"s_cmp_ge_u32 s{sW}, 4")
    G("v_sub_u32 v15, 0, v15")
    G("s_cbranch_scc0 L_a3")
    seg("B")
    G(idx0)
    waitvm(("v", IDX))
    for k in range(2):
        G(f"v_lshlrev_b32 {v(IDX + k)}, 6, {v(IDX + k)}")
    for g in range(cfg.D0):
        G(g_addr(g))
        G(g_load(g))
    G("s_nop 0")
    seg("both")
    G("L_a3:")
    G(idx1)
    for g in range(cfg.D0, D):
        G(g_addr(g))
        G(g_load(g))
    G("L_start:")
    G(f"s_setprio {cfg.prio[0]}")
    stamp(True)
    conv_at = {u: g for g, u in enumerate(cfg.convU) if u >= 0}
    nstart = sum(u < 0 for u in cfg.convU)
    st = dict(credit=0.0, maxdone=0, odd=False, written=-1, pend_c=None, g_ready=None, gnext=D, gallow=D, cur=-1, shifted=False)
    rq = [(b, x, q) for b in range(2) for x in VORD for q in range(2)]
    issued, at, slot = {}, {}, {}
    free = list(range(NS))
    vreg = lambda b, x: SLOT[slot[b, x]]

    def can_read():
        if not rq:
            return False
        b, x, q = rq[0]
        return 7 * b + GNEED[x] <= st["written"] and (q == 1 or bool(free))

    def do_read():
        b, x, q = rq.pop(0)
        if q == 0:
            slot[b, x] = free.pop(0)
        issued[b, x] = q + 1
        at[b, x] = st["cur"]
        A(f"ds_read_b128 {v(vreg(b, x) + 4 * q, 4)}, {v(AD[VEC[x][0]])} offset:{VEC[x][1] * FS + 32 * q}")

    def P(n, k):
        b, u = divmod(n, UB)
        xa, xb = PAIRS[u]
        d = PL(n) + k if k < 4 else PH + k - 4
        A(f"v_pk_mul_f16 {v(d)}, {v(vreg(b, xa) + k)}, {v(vreg(b, xb) + k)}")
    F = lambda n, k: A(f"v_fma_f32 {v(X(n) + k)}, |{v(X(n) + k)}|, {v(RR + k)}, |{v(X(n) + 8 + k)}|")
    A.autowait = True
    win = [Xr[0], Xr[1], CV]
    for g in range(2):
        A(c_m(g, win[g]))
        if g == 0:
            stamp(True)
        A(g_addr(D + g))
        A(g_load(D + g))
    for g in range(2):
        A("\n".join(c_ops(win[g])))
        A(c_w(g, win[g]))
        st["written"] = g
    while can_read():
        do_read()
    st["gnext"] = st["gallow"] = D + 2
    assert nstart in (2, 3)
    if nstart == 3:
        A(c_m(2, CV))
        st["pend_c"] = 2
        st["gallow"] = D + 3
    for k in range(4):
        P(0, k)
    A("s_waitcnt lgkmcnt(0)")
    A("s_nop 0")
    A.autowait = False
    stamp(True)
    A(".p2align 3")
    main0 = len(A.ins)

    sm = []
    for T in range(2 * NT):
        b, t = divmod(T, NT)
        e, L_, ACC = tilereg(T), vL[b], vACC[b]
        add = lambda cost, text, Td=T: sm.append((b * UB + min(2 * t + 1, UB - 1) + 2, cost, text, deadline(Td)))
        if t == NT - 1:
            add(1, f"v_add_f32@ {v(e)}, {v(e)}, {v(vMASK)}")
        if t == 0:
            add(2, f"v_exp_f32@ {v(L_)}, {v(e)}")
            tail = [f"v_mul_f32@ {v(ACC)}, {v(L_)}, {v(e + 1)}"]
        else:
            add(2, f"v_exp_f32@ {v(e)}, {v(e)}")
            tail = [f"v_add_f32@ {v(L_)}, {v(L_)}, {v(e)}", f"v_fmac_f32@ {v(ACC)}, {v(e)}, {v(e + 1)}"]
        for o in tail:
            add(1, o)

    def emit(text):
        if "@" in text:
            A(text.replace("@", "_e32" if st["odd"] else "_e64"))
            st["odd"] = False
        else:
            align()
            A(text)

    def small(text):
        A(text)
        st["odd"] = not st["odd"]

    def align():
        if st["odd"]:
            small("s_nop 0")

    def softmax_slots(n, budget, late=0):
        used = cnt = 0
        while used < budget and sm and sm[0][0] <= n:
            k = 0
            if A.ins[-1].op.startswith("v_exp") and set(A.ins[-1].w) & set(Ins(sm[0][2].replace("@", "")).r):
                k = next((i for i, it in enumerate(sm[:4]) if it[1] == 2 and it[0] <= n and "v13" not in sm[i - 1][2]), None)
                if k is None:
                    if A.nopad:
                        break
                    k = 0
            it = sm.pop(k)
            assert n + late <= it[3], f"tile read too late in unit {n}: {it}"
            emit(it[2])
            used += it[1]
            cnt += 1
        return used, cnt

    def urgent(n0, per=1):
        return any(n0 + i // per > b * UB + FIRST[x] - cfg.urg for i, (b, x, q) in enumerate(rq[:10]))

    def hook(nxt_h2, per=1):
        if can_read() and urgent(nxt_h2, per):
            do_read()
            return 1
        return 0

    def lg_count(n):
        b, u = divmod(n, UB)
        regs = {("v", vreg(b, x) + k) for x in PAIRS[u] for k in range(8)}
        last = max([i for i, q in enumerate(A.lg) if q[0] & regs], default=-1)
        return [f"lgkmcnt({len(A.lg) - 1 - last})"] if last >= 0 else []

    def vm_count(key):
        last = max([i for i, q in enumerate(A.vm) if key in q[0]], default=-1)
        return [len(A.vm) - 1 - last] if last >= 0 else []
    ready2 = lambda n: all(issued.get((n // UB, x)) == 2 for x in PAIRS[n % UB])
    A.nopad = True
    for n in range(NP + 1):
        b, u = divmod(n, UB)
        live = n < NP
        st["cur"] = n
        par, T = u & 1, tileof(n)
        if n >= NP - 1:
            A.nopad = False
        if live:
            A(f"{mh} {v(X(n), 16)}, {v(WP, 4)}, {v(PL(n), 4)}, {v(BIAS, 16)}")
            hook(n, 3)
            for k in range(4, 8):
                P(n, k)
            for x in PAIRS[u]:
                if LAST[x] == u:
                    free.append(slot[b, x])
        if n:
            F(n - 1, 2)
            F(n - 1, 3)
        else:
            A("s_nop 0")
            A("s_nop 0")
        extra = 0
        if live:
            A(f"{mh} {v(X(n), 16)}, {v(WP + 4, 4)}, {v(PH, 4)}, {v(X(n), 16)}")
        if n + 1 < NP:
            assert ready2(n + 1), f"vectors of pair {n + 1} not issued"
            w_ = lg_count(n + 1)
            if w_:
                small("s_waitcnt " + w_[0])
                align()
                extra += 2
            else:
                extra += hook(n, 3)
        if n:
            for k in range(4, 8):
                F(n - 1, k)
        if n + 1 < NP:
            P(n + 1, 0)
            P(n + 1, 1)
        if n:
            A(f"v_smfmac_f32_16x16x64_bf16 {v(tilereg(tileof(n - 1)), 4)}, {v(AABS + 4 * ((n - 1) % UB & 1), 4)}, {v(X(n - 1), 8)}, {v(vSIDX)}")
        conv = conv_at.get(n)
        if st["g_ready"] is not None:
            A(g_load(st["g_ready"]))
            st["g_ready"] = None
            extra += 1
        elif can_read():
            do_read()
            extra += 1
        if n and n in cfg.prio:
            small(f"s_setprio {cfg.prio[n]}")
            extra += 1
        vmw = []
        want_g = st["gnext"] < min(14, st["gallow"] + (conv is not None))
        shift = want_g and st["gnext"] >= 7 and not st["shifted"]
        if conv is not None:
            assert conv < st["gnext"]
            vmw += vm_count(("v", greg(conv)))
        if shift:
            vmw += vm_count(("v", IDX + 2))
        w_ = [f"vmcnt({min(vmw)})"] if vmw else []
        if n + 2 < NP and ready2(n + 2) and all(at[(n + 2) // UB, x] < n for x in PAIRS[(n + 2) % UB]):
            w_ += lg_count(n + 2)
        if w_:
            small("s_waitcnt " + " ".join(w_))
            extra += 1
        st["credit"] += cfg.rate
        cnt = 0
        if shift:
            st["shifted"] = True
            for k in (2, 3):
                emit(f"v_lshlrev_b32@ {v(IDX + k)}, 6, {v(IDX + k)}")
            cnt += 2
        soon = any(n + i in conv_at for i in range(cfg.hold + 1))
        budget = (0 if cnt or st["pend_c"] is not None else 1) if soon else st["credit"]
        if st["odd"] and budget == 0:
            budget = 1
        acc_ = 0
        for it in sm[:40]:
            if it[0] > n:
                break
            acc_ += it[1]
            if it[3] is not None:
                budget = max(budget, acc_ - 4 * (it[3] - n))
        used, c_ = softmax_slots(n, budget)
        st["credit"] -= used
        cnt += c_
        if st["pend_c"] is not None:
            if n == 0:
                A("s_nop 0")
                A("s_nop 0")
            for o in c_ops(CV):
                emit(o)
            cnt += 4
        if want_g and conv is None and not shift:
            emit(g_addr(st["gnext"]))
            st["g_ready"] = st["gnext"]
            st["gnext"] += 1
            cnt += 1
        align()
        if live and extra + cnt < (5 if n == 0 else 1):
            small("s_nop 4" if n == 0 else "s_nop 0")
            small("s_nop 0")
        if live:
            A(f"{ml} {v(tilereg(T), 4)}, {v(ALIN + 8 * par, 4)}, {v(PL(n), 4)}, {v(tilereg(T), 4) if par else '0'}")
        if st["pend_c"] is not None:
            gb, gt = divmod(st["pend_c"], 7)
            assert not any(b2 < gb and gt in GTOUCH[x] for b2, x, q in rq), "LDS region still to be read"
            A(c_w(st["pend_c"], CV))
            st["written"] = st["pend_c"]
            st["pend_c"] = None
        else:
            hook(n + 1)
        if n + 1 < NP:
            P(n + 1, 2)
            P(n + 1, 3)
        if live:
            A(f"{ml} {v(tilereg(T), 4)}, {v(ALIN + 8 * par + 4, 4)}, {v(PH, 4)}, {v(tilereg(T), 4)}")
            hook(n + 1)
            F(n, 0)
            F(n, 1)
        if conv is not None:
            A(c_m(conv, CV))
            st["pend_c"] = conv
            st["gallow"] = conv + D + 1
            k = 6
            if want_g:
                emit(g_addr(st["gnext"]))
                st["g_ready"] = st["gnext"]
                st["gnext"] += 1
                k -= 1
            used, c_ = softmax_slots(n, k, 1)
            st["credit"] -= used
        st["credit"] = min(st["credit"], 6.0 if (n + 1) in conv_at else 2.0)
    softmax_slots(NP + 1, 10 ** 6)
    assert not sm and not rq and st["gnext"] == 14 and st["g_ready"] is None
    main1 = len(A.ins)
    stamp(True)
    END = "L_fin" if cfg.stamps else "L_end"
    A(f"v_permlane32_swap_b32 {v(vL[0])}, {v(vL[1])}")
    A("s_lshl_b32 s43, s3, 4")
    A(f"v_permlane32_swap_b32 {v(vACC[0])}, {v(vACC[1])}")
    A(f"v_add_f32 v1, {v(vL[0])}, {v(vL[1])}")
    A(f"v_add_f32 v2, {v(vACC[0])}, {v(vACC[1])}")
    A(f"v_add_f32 v3, {v(vACC[0])}, {v(vACC[1])}")
    A("v_bfe_u32 v4, v0, 2, 4")
    A("v_permlane16_swap_b32 v1, v2")
    A("v_add_f32 v1, v1, v2")
    A(f"v_lshrrev_b32 v5, 3, {v(vCH)}")
    A("v_add3_u32 v4, v4, v5, s43")
    A(f"v_add_f32_dpp v1, v1, v1 {dpp('row_ror:4')}")
    A(f"v_mul_f32 v3, {f32(2.0 ** -5)}, v3")
    A("s_movk_i32 s44, 0x1f8")
    A(f"v_add_f32_dpp v1, v1, v1 {dpp('row_ror:8')}")
    A("v_mov_b32 v2, v1")
    A(f"s_mov_b32 s45, {hex(27 << 23)}")
    A(f"s_mov_b32 s46, {hex(220 << 23)}")
    A("v_permlane16_swap_b32 v1, v2")
    A("v_rcp_f32 v5, v1")
    A("v_cmp_ge_f32_e64 s[40:41], |v3|, v1")
    A("v_subrev_u32 v1, s45, v1")
    A("v_mul_f32 v2, v2, v5")
    A("v_cmp_gt_u32_e64 s[42:43], s46, v1")
    A("v_ldexp_f32 v2, v2, v15")
    for sh in (16, 8, 4):
        A(f"s_lshr_b64 s[48:49], s[40:41], {sh}")
        A("s_or_b64 s[40:41], s[40:41], s[48:49]")
        if sh == 16:
            A("v_cmp_class_f32_e64 vcc, v2, s44")
            A("v_cvt_pk_bf16_f32 v2, v2, v2")
    A("s_and_b64 s[42:43], s[42:43], vcc")
    A("s_and_b64 s[40:41], s[40:41], s[42:43]")
    A("s_and_b32 exec_lo, s40, 15")
    A("s_and_b32 exec_hi, s41, 15")
    A("s_cbranch_execz L_nostore")
    A("buffer_store_short v2, v4, s[24:27], 0 offen")
    A("L_nostore:")
    A("s_lshl_b32 s41, exec_hi, 4")
    A("s_or_b32 s40, s41, exec_lo")
    A("s_xor_b32 s40, s40, 0xff")
    A(f"s_cbranch_scc0 {END}")
    H_, Dm = 32, 48
    A.autowait = True
    A("s_mov_b64 exec, -1")
    A("s_load_dwordx8 s[8:15], s[0:1], 32")
    A("v_and_b32 v1, 31, v0")
    A("v_bfe_u32 v2, v0, 5, 1")
    A("v_min_u32 v3, 25, v1")
    A("v_lshlrev_b32 v4, 3, v2")
    A("v_lshlrev_b32 v5, 1, v1")
    A("v_lshlrev_b32 v6, 1, v2")
    for r in range(16):
        A(f"global_load_ushort {v(H_ + r)}, v4, s[12:13] offset:{2 * ((r & 3) + 8 * (r >> 2))}")
    A("global_load_ushort v7, v5, s[10:11]")
    A("v_cvt_f32_u32 v8, v2")
    A("v_sub_f32 v8, 1.0, v8")
    A("s_waitcnt vmcnt(0)")
    for r in range(16):
        A(f"v_lshlrev_b32 {v(H_ + r)}, 16, {v(H_ + r)}")
    A("s_mov_b32 exec_lo, 0")
    A("v_mov_b32 v7, 0")
    A("s_mov_b32 exec_lo, -1")
    A("v_lshlrev_b32 v7, 16, v7")
    A("L_samp:")
    A("s_ff1_i32_b32 s42, s40")
    A("s_bitset0_b32 s40, s42")
    A("s_lshl_b32 s43, s3, 3")
    A("s_add_u32 s43, s43, s42")
    A("s_mul_i32 s44, s43, 104")
    A("v_mov_b32 v10, 0xff7fffff")
    A("v_mov_b32 v11, 0")
    A("v_mov_b32 v12, 0")
    A("s_mov_b32 s45, 1")
    A("L_delta:")
    A("v_add_u32 v13, s45, v3")
    A("v_subrev_u32 v14, 26, v13")
    A("v_min_u32 v13, v13, v14")
    A("v_lshl_add_u32 v13, v13, 2, s44")
    A("v_lshl_add_u32 v14, v3, 2, s44")
    A("global_load_dword v13, v13, s[4:5]")
    A("global_load_dword v14, v14, s[4:5]")
    A(f"v_mfma_f32_32x32x2_f32 {v(Dm, 16)}, v7, v8, 0")
    A("v_lshl_add_u32 v15, v2, 6, v5")
    A("v_mov_b32 v16, v6")
    A("v_mov_b32 v17, 0")
    A("s_mov_b32 s46, 0")
    A("v_lshl_add_u32 v13, v13, 6, v6")
    A("v_lshl_add_u32 v14, v14, 6, v6")
    A("L_d:")
    A("buffer_load_ushort v18, v13, s[20:23], s46 offen")
    A("buffer_load_ushort v19, v14, s[20:23], s46 offen")
    A("global_load_ushort v20, v15, s[8:9]")
    A("global_load_ushort v21, v16, s[14:15]")
    A("v_add_u32 v15, 128, v15")
    A("v_add_u32 v16, 4, v16")
    A("s_add_u32 s46, s46, 4")
    A("s_waitcnt vmcnt(0)")
    for r in range(18, 22):
        A(f"v_lshlrev_b32 v{r}, 16, v{r}")
    A("v_mul_f32 v18, v18, v19")
    A("s_cmp_lt_u32 s46, 64")
    A("v_fmac_f32 v17, v18, v21")
    A(f"v_mfma_f32_32x32x2_f32 {v(Dm, 16)}, v20, v18, {v(Dm, 16)}")
    A("s_cbranch_scc1 L_d")
    A("s_nop 15")
    A("s_nop 3")
    A("v_mov_b32 v18, 0")
    for r in range(16):
        A(f"v_add_f32_e64 {v(Dm + r)}, {v(Dm + r)}, |{v(Dm + r)}|")
        A(f"v_fmac_f32 v18, {v(Dm + r)}, {v(H_ + r)}")
    A("v_mov_b32 v19, v18")
    A("v_mov_b32 v20, v17")
    A("s_cmp_eq_u32 s45, 13")
    A("s_cselect_b32 s46, 13, 26")
    A("v_permlane32_swap_b32 v18, v19")
    A("v_permlane32_swap_b32 v17, v20")
    A("v_add_f32 v18, v18, v19")
    A("v_add_f32 v17, v17, v20")
    A("v_mul_f32 v18, 0.5, v18")
    A("v_cmp_gt_u32_e64 vcc, s46, v1")
    A("s_mov_b64 exec, vcc")
    A("v_max_f32 v19, v10, v18")
    A("v_sub_f32 v20, v10, v19")
    A("v_sub_f32 v18, v18, v19")
    A(f"v_mul_f32 v20, {f32(math.log2(math.e))}, v20")
    A(f"v_mul_f32 v18, {f32(math.log2(math.e))}, v18")
    A("v_exp_f32 v20, v20")
    A("v_exp_f32 v18, v18")
    A("v_mov_b32 v10, v19")
    A("v_mul_f32 v12, v12, v20")
    A("v_fma_f32 v11, v11, v20, v18")
    A("v_fmac_f32 v12, v18, v17")
    A("s_mov_b64 exec, -1")
    A("s_add_u32 s45, s45, 1")
    A("s_cmp_le_u32 s45, 13")
    A("s_cbranch_scc1 L_delta")
    rors = ("row_ror:1", "row_ror:2", "row_ror:4", "row_ror:8")

    def reduce(op, r):
        for c in rors:
            A(f"{op}_dpp {r}, {r}, {r} {dpp(c)}")
        A(f"v_mov_b32 v14, {r}")
        A(f"v_permlane16_swap_b32 {r}, v14")
        A(f"{op} {r}, {r}, v14")
    A("v_mov_b32 v13, v10")
    reduce("v_max_f32", "v13")
    A("v_sub_f32 v10, v10, v13")
    A(f"v_mul_f32 v10, {f32(math.log2(math.e))}, v10")
    A("v_exp_f32 v10, v10")
    A("v_mul_f32 v11, v11, v10")
    A("v_mul_f32 v12, v12, v10")
    reduce("v_add_f32", "v11")
    reduce("v_add_f32", "v12")
    A("v_rcp_f32 v11, v11")
    A("s_lshl_b32 s43, s43, 1")
    A("v_mov_b32 v13, s43")
    A("v_mul_f32 v12, v12, v11")
    A("v_cvt_pk_bf16_f32 v12, v12, v12")
    A("s_mov_b64 exec, 1")
    A("buffer_store_short v12, v13, s[24:27], 0 offen")
    if cfg.count:
        A("s_load_dwordx2 s[48:49], s[0:1], 72")
        A("v_mov_b32 v13, 0")
        A("v_mov_b32 v14, 1")
        A("global_atomic_add v13, v14, s[48:49]")
    A("s_mov_b64 exec, -1")
    A("s_cmp_lg_u32 s40, 0")
    A("s_cbranch_scc1 L_samp")
    A.autowait = False
    if cfg.stamps:
        A("L_fin:")
        A("s_waitcnt vmcnt(0)")
        stamp(True, True)
        if cfg.diag:
            i_, j_ = cfg.diag
            A(f"s_sub_u32 s44, s{58 + 4 * j_}, s{58 + 4 * i_}")
            A("s_lshl_b32 s44, s44, 3")
            if cfg.diagrole:
                A(f"s_cmp_ge_u32 s{sW}, 4")
                A("s_cbranch_scc1 L_end" if cfg.diagrole == "A" else "s_cbranch_scc0 L_end")
            A("s_min_u32 s44, s44, 30000")
            A("s_mov_b32 s45, 200000")
            A("L_spin:")
            A("s_sleep 4")
            A("s_memrealtime s[42:43]")
            A("s_waitcnt lgkmcnt(0)")
            A(f"s_sub_u32 s42, s42, s{58 + 4 * (nst[0] - 1)}")
            A("s_cmp_ge_u32 s42, s44")
            A("s_cbranch_scc1 L_end")
            A("s_sub_u32 s45, s45, 1")
            A("s_cmp_lg_u32 s45, 0")
            A("s_cbranch_scc1 L_spin")
        else:
            A("s_mov_b64 exec, 1")
            A("s_lshl_b32 s3, s3, 7")
            A("v_mov_b32 v4, s3")
            for i in range(nst[0]):
                A(f"v_mov_b32 v2, s{56 + 4 * i}")
                A(f"v_mov_b32 v3, s{58 + 4 * i}")
                A(f"global_store_dwordx2 v4, v[2:3], s[18:19] offset:{8 * i}")
    A("L_end:")
    A("s_endpgm")
    segs.append(("end", len(A.ins)))
    if cfg.verbose:
        cyc, stall = simulate(A.ins[main0:main1])
        vec = simulate([i for i in A.ins[main0:main1] if i.kind in ("valu", "mfma")])
        kinds = {}
        for i in A.ins[main0:main1]:
            if i.real:
                kinds[i.kind] = kinds.get(i.kind, 0) + 1
        print(f"role {role}: main model {cyc} alone (stall {stall}), vector only {vec}, {kinds}; slots {NS}; prologue model {simulate(A.ins[:main0])[0]}; pads {A.pads}")
    return A, segs


def gen(cfg):
    tr = {r: gen_role(cfg, r) for r in ("A", "B0", "B1", "B2", "B3")}
    out = Asm()
    sa = tr["A"][1]
    for i in range(len(sa) - 1):
        parts = [A.ins[sg[i][1]:sg[i + 1][1]] for A, sg in tr.values()]
        parts = [p for p in parts if p]
        for p in parts[1:]:
            assert [x.text for x in p] == [x.text for x in parts[0]], f"segment {i} ({sa[i][0]}) differs between the roles"
        out.ins += parts[0]
    return out


HEAD = """; @launch grid=(256,1,1) block=(512,1,1) lds={lds}
.amdgcn_target "amdgcn-amd-amdhsa--gfx950"
.text
.globl {n}_kernel
.p2align 8
.type {n}_kernel,@function
{n}_kernel:
"""
TAIL = """.section .rodata,"a"
.p2align 6
.amdhsa_kernel {n}_kernel
  .amdhsa_next_free_vgpr 256
  .amdhsa_next_free_sgpr 96
  .amdhsa_accum_offset 256
  .amdhsa_group_segment_fixed_size 0
  .amdhsa_kernarg_size 88
  .amdhsa_user_sgpr_count 2
  .amdhsa_user_sgpr_kernarg_segment_ptr 1
  .amdhsa_system_sgpr_workgroup_id_x 1
.end_amdhsa_kernel
"""

if __name__ == "__main__":
    out = sys.argv[1]
    for kv in sys.argv[2:]:
        k, val = kv.split("=", 1)
        assert hasattr(Cfg, k), k
        setattr(Cfg, k, eval(val))
    A = gen(Cfg)
    open(out, "w").write(HEAD.format(n=NAME, lds=LDS_BYTES) + A.text() + TAIL.format(n=NAME))
    print("instructions:", sum(i.real for i in A.ins), "bytes:", sum(size_of(i) for i in A.ins if i.real), "max vgpr:", A.maxv(), "lds:", LDS_BYTES)
```
